```python
import torch

def _softmax(x, axis=-1):
    return torch.softmax(x, dim=axis)
def _gelu(x):
    return torch.nn.functional.gelu(x, approximate="tanh")
def _silu(x):
    return torch.nn.functional.silu(x)
def _sigmoid(x):
    return torch.sigmoid(x)
def _layernorm(x, axis=-1, eps=1e-5):
    m = x.mean(dim=axis, keepdim=True)
    v = x.var(dim=axis, keepdim=True, unbiased=False)
    return (x - m) / torch.sqrt(v + eps)
def _scatter_add(tgt, idx, src, axis=0):
    return tgt.clone().index_add_(axis, idx, src)
def _segment_sum(src, seg, n):
    out = torch.zeros((n,) + src.shape[1:], dtype=src.dtype)
    return out.index_add_(0, seg, src)
def _pad(x, pw):
    flat = tuple(v for pair in reversed(pw) for v in pair)
    return torch.nn.functional.pad(x, flat)

kernel_name = 'sequential_preLN__softmax_full_mha__glu_gated_glu__prompt'

def setup_inputs():

    _w = (lambda a: (lambda t: t.to(torch.bfloat16) if t.is_floating_point() else t)(torch.as_tensor(a)))
    def _A_setup():
        B, S, D = 1, 2048, 1024
        return {
            "x": _w((lambda *s: torch.randn(*s, dtype=torch.bfloat16) * 0.05)(B, S, D)),
            "wqkv": _w((lambda *s: torch.randn(*s, dtype=torch.bfloat16) * 0.05)(D, 3 * D)),
            "wo": _w((lambda *s: torch.randn(*s, dtype=torch.bfloat16) * 0.05)(D, D)),
        }
    _A_in = _A_setup()

    def _B_setup():
        B, S, D, F = 1, 2048, 1024, 3584
        return {
            "x": _w((lambda *s: torch.randn(*s, dtype=torch.bfloat16) * 0.05)(B, S, D)),
            "w_gate": _w((lambda *s: torch.randn(*s, dtype=torch.bfloat16) * 0.05)(D, F)),
            "w_up": _w((lambda *s: torch.randn(*s, dtype=torch.bfloat16) * 0.05)(D, F)),
            "w_down": _w((lambda *s: torch.randn(*s, dtype=torch.bfloat16) * 0.05)(F, D)),
        }
    _B_in = _B_setup()

    return {
        "A_x": _A_in["x"],
        "A_wqkv": _A_in["wqkv"],
        "A_wo": _A_in["wo"],
        "B_x": _B_in["x"],
        "B_w_gate": _B_in["w_gate"],
        "B_w_up": _B_in["w_up"],
        "B_w_down": _B_in["w_down"],
    }

def reference(A_x, A_wqkv, A_wo, B_x, B_w_gate, B_w_up, B_w_down):
    def _A_ref(x, wqkv, wo):
        B, S, D = x.shape
        H = 32; Dh = D // H
        qkv = (lambda x, *d: x.permute(*d))((x @ wqkv).reshape(B, S, 3, H, Dh), 2, 0, 3, 1, 4)
        q, k, v = qkv[0], qkv[1], qkv[2]
        scale = Dh ** -0.5
        scores = torch.einsum("bhqd,bhkd->bhqk", q, k) * scale
        p = _softmax(scores, axis=-1)
        o = torch.einsum("bhqk,bhkd->bhqd", p, v)
        return (lambda x, *d: x.permute(*d))(o, 0, 2, 1, 3).reshape(B, S, D) @ wo

    def _B_ref(x, w_gate, w_up, w_down):
        g = torch.einsum("bsd,df->bsf", x, w_gate)
        u = torch.einsum("bsd,df->bsf", x, w_up)
        h = _sigmoid(g) * u
        return torch.einsum("bsf,fd->bsd", h, w_down)

    x = A_x
    h = x + _A_ref(_layernorm(x, axis=-1), A_wqkv, A_wo)
    h2 = h + _B_ref(_layernorm(h, axis=-1), B_w_gate, B_w_up, B_w_down)
    return h2
```

```python
class K:
    def __init__(self, name, grid, block, lds, vgpr=256, sgpr=102, accum=None):
        self.name, self.grid, self.block, self.lds = name, grid, block, lds
        self.vgpr, self.sgpr, self.accum = vgpr, sgpr, accum
        self.l = []
        self.uid = 0
    def __call__(self, s):
        for x in s.split('\n'):
            x = x.strip()
            if x: self.l.append('    ' + x if not x.endswith(':') else x)
    def label(self, p='L'):
        self.uid += 1
        return f'{p}_{self.name}_{self.uid}'
    def text(self):
        return (f'.p2align 8\n.globl {self.name}\n.type {self.name},@function\n{self.name}:\n'
                + '\n'.join(self.l) + '\n    s_endpgm\n')
    def desc(self):
        acc = self.accum if self.accum else min(256, (self.vgpr + 3) // 4 * 4)
        return (f'.p2align 6\n.amdhsa_kernel {self.name}\n  .amdhsa_next_free_vgpr {self.vgpr}\n'
                f'  .amdhsa_next_free_sgpr {self.sgpr}\n  .amdhsa_accum_offset {acc}\n'
                '  .amdhsa_group_segment_fixed_size 0\n  .amdhsa_kernarg_size 80\n'
                '  .amdhsa_user_sgpr_count 2\n  .amdhsa_user_sgpr_kernarg_segment_ptr 1\n'
                '  .amdhsa_system_sgpr_workgroup_id_x 1\n.end_amdhsa_kernel\n')

def build(kernels, launches=None, header=''):
    launches = launches or kernels
    s = header
    for k in launches:
        s += f'; @launch kernel={k.name} grid=({k.grid},1,1) block=({k.block},1,1) lds={k.lds}\n'
    s += '.amdgcn_target "amdgcn-amd-amdhsa--gfx950"\n.text\n'
    for k in kernels: s += k.text()
    s += '.section .rodata,"a"\n'
    for k in kernels: s += k.desc()
    return s

def srd(k, d, base, nbytes):
    k(f's_mov_b32 s{d}, s{base}')
    k(f's_and_b32 s{d+1}, s{base+1}, 0xffff')
    k(f's_mov_b32 s{d+2}, {nbytes}')
    k(f's_mov_b32 s{d+3}, 0x00020000')
def v(a, n=1): return f'v{a}' if n == 1 else f'v[{a}:{a+n-1}]'
def a_(a, n=1): return f'a{a}' if n == 1 else f'a[{a}:{a+n-1}]'
def s(a, n=1): return f's{a}' if n == 1 else f's[{a}:{a+n-1}]'
```

```python
from common import *
def attn_kernel():
    k = K('attn_kernel', 256, 512, 8 * 5 * 1024, vgpr=200, sgpr=48)
    guard(k, 256)
    k(f's_load_dwordx2 s[4:5], s[0:1], {ARG_WS}')
    Q, KB, VB, S, PP, O, LL, NM, SEL = 0, 16, 32, 48, 80, 96, 128, 136, 168
    VL, VA, T = 172, 173, 176
    k(f'v_lshrrev_b32 v{VL}, 6, v0\ns_nop 0\nv_readfirstlane_b32 s16, v{VL}\nv_and_b32 v{VL}, 63, v0\nv_lshlrev_b32 v{VA}, 4, v{VL}')
    k('s_and_b32 s17, s2, 7\ns_lshl_b32 s17, s17, 2\ns_bfe_u32 s18, s2, 0x20003\ns_add_u32 s17, s17, s18\ns_lshr_b32 s18, s2, 5')
    k('s_and_b32 s19, s16, 3\ns_lshr_b32 s20, s16, 2')
    k('s_waitcnt lgkmcnt(0)')
    srd_off(k, 8, 4, WS_Q, 12 * MB); srd_off(k, 12, 4, WS_O, 4 * MB)
    k('s_lshl_b32 s21, s18, 3\ns_lshl_b32 s22, s19, 1\ns_add_u32 s21, s21, s22\ns_add_u32 s22, s21, s20\ns_xor_b32 s23, s22, 1')
    k('s_lshl_b32 s24, s17, 17')
    k('s_lshl_b32 s25, s22, 11\ns_add_u32 s25, s25, s24\ns_lshl_b32 s26, s23, 11\ns_add_u32 s26, s26, s24')
    for sl in range(2):
        for s_ in range(2): k(f'buffer_load_dwordx4 v[{Q+sl*8+s_*4}:{Q+sl*8+s_*4+3}], v{VA}, s[8:11], s{25+sl} offen offset:{s_*1024}')
    k(f's_add_u32 s27, s24, {4*MB}')
    for s_ in range(2): k(f'buffer_load_dwordx4 v[{VB+8+s_*4}:{VB+8+s_*4+3}], v{VA}, s[8:11], s27 offen offset:{s_*1024}')
    k(f's_lshl_b32 s28, s20, 16\ns_add_u32 s28, s28, s27\ns_add_u32 s29, s28, {4*MB}')
    def ldK(b): return [f'buffer_load_dwordx4 v[{KB+b*8+s_*4}:{KB+b*8+s_*4+3}], v{VA}, s[8:11], s28 offen offset:{s_*1024}' + ('\ns_add_u32 s28, s28, 2048' if s_ else '') for s_ in range(2)]
    def ldV(b): return [f'buffer_load_dwordx4 v[{VB+b*8+s_*4}:{VB+b*8+s_*4+3}], v{VA}, s[8:11], s29 offen offset:{s_*1024}' + ('\ns_add_u32 s29, s29, 2048' if s_ else '') for s_ in range(2)]
    for x in ldK(0) + ldK(1) + ldV(0): k(x)
    k(f'v_and_b32 v{T}, 3, v{VL}\nv_bfe_u32 v{T+1}, v{VL}, 2, 1\nv_bfe_u32 v{T+2}, v{VL}, 4, 1\nv_xor_b32 v{T+1}, v{T+1}, v{T+2}\nv_or_b32 v{T}, v{T}, v{T+1}')
    k(f'v_cmp_eq_u32 vcc, 0, v{T}\nv_mov_b32 v{T+1}, 0x3f803f80\ns_nop 1\nv_cndmask_b32 v{SEL}, 0, v{T+1}, vcc')
    for i in range(1, 4): k(f'v_mov_b32 v{SEL+i}, v{SEL}')
    for i in range(40): k(f'v_mov_b32 v{O+i}, 0')
    for i in range(8): k(f'v_mov_b32 v{PP+8+i}, 0')
    def rowmax(src, dst):
        k(f'v_max3_f32 v{dst}, v{src}, v{src+1}, v{src+2}')
        for i in range(3, 15, 2): k(f'v_max3_f32 v{dst}, v{dst}, v{src+i}, v{src+i+1}')
        k(f'v_max_f32 v{dst}, v{dst}, v{src+15}')
    def xhalf_max(r, t):
        k(f'v_mov_b32 v{t}, v{r}\ns_nop 1\nv_permlane32_swap_b32 v{t}, v{r}\ns_nop 1\nv_max_f32 v{r}, v{r}, v{t}')
    k('s_waitcnt vmcnt(6)')
    for sl in range(2):
        k(f'v_mfma_f32_32x32x16_bf16 {v(S+sl*16,16)}, {v(VB+8,4)}, {v(Q+sl*8,4)}, 0')
        k(f'v_mfma_f32_32x32x16_bf16 {v(S+sl*16,16)}, {v(VB+12,4)}, {v(Q+sl*8+4,4)}, {v(S+sl*16,16)}')
    k('s_nop 15')
    for sl in range(2):
        rowmax(S + sl * 16, T); xhalf_max(T, T + 1)
        for i in range(16): k(f'v_sub_f32 v{NM+sl*16+i}, 0, v{T}')
    def qk(kb, sl): return [f'v_mfma_f32_32x32x16_bf16 {v(S+sl*16,16)}, {v(KB+kb*8,4)}, {v(Q+sl*8,4)}, {v(NM+sl*16,16)}',
                            f'v_mfma_f32_32x32x16_bf16 {v(S+sl*16,16)}, {v(KB+kb*8+4,4)}, {v(Q+sl*8+4,4)}, {v(S+sl*16,16)}']
    def pv(vb, sl): return [f'v_mfma_f32_32x32x16_bf16 {v(O+sl*16,16)}, {v(VB+vb*8+s_*4,4)}, {v(PP+sl*8+s_*4,4)}, {v(O+sl*16,16)}' for s_ in range(2)]
    def sm(sl): return [f'v_mfma_f32_16x16x32_bf16 {v(LL+sl*4,4)}, {v(SEL,4)}, {v(PP+sl*8+s_*4,4)}, {v(LL+sl*4,4)}' for s_ in range(2)]
    def unit(sl, mq, mp, ms, extra):
        ex = [f'v_exp_f32 v{S+sl*16+i}, v{S+sl*16+i}' for i in range(16)]
        cv = [f'v_cvt_pk_bf16_f32 v{PP+sl*8+i}, v{S+sl*16+2*i}, v{S+sl*16+2*i+1}' for i in range(8)]
        seq = [mq[0:1], ex[0:3], mp[0:1], ex[3:6], cv[0:1], mq[1:2], extra[0:1], ex[6:9], cv[1:3], mp[1:2], extra[1:2], ex[9:12], cv[3:4], ms[0:1], extra[2:3],
               ex[12:14], cv[4:6], ms[1:2], extra[3:4], ex[14:16], cv[6:7], cv[7:8]]
        for g in seq:
            for x in g: k(x)
    k('s_waitcnt vmcnt(4)\ns_nop 1')
    for x in qk(0, 0): k(x)
    k('s_nop 15')
    L = k.label('loop')
    k(f's_mov_b32 s30, 16\n{L}:')
    for b in range(2):
        unit(0, qk(b, 1), pv(b ^ 1, 1), sm(1), [])
        k('s_waitcnt vmcnt(0)')
        unit(1, qk(b ^ 1, 0), pv(b, 0), sm(0), ldK(b) + ldV(b ^ 1))
    k(f's_sub_u32 s30, s30, 1\ns_cmp_lg_u32 s30, 0\ns_cbranch_scc1 {L}')
    k('s_nop 1')
    for x in pv(1, 1) + sm(1): k(x)
    k('s_nop 15')
    k(f's_xor_b32 s21, s16, 4\ns_mul_i32 s21, s21, 5120\nv_add_u32 v{T}, s21, v{VA}\ns_mul_i32 s21, s16, 5120\nv_add_u32 v{T+1}, s21, v{VA}')
    for q in range(4): k(f'ds_write_b128 v{T}, {v(O+16+4*q,4)} offset:{q*1024}')
    k(f'ds_write_b128 v{T}, {v(LL+4,4)} offset:4096')
    k('s_waitcnt lgkmcnt(0)\ns_barrier')
    for q in range(4): k(f'ds_read_b128 {v(O+16+4*q,4)}, v{T+1} offset:{q*1024}')
    k(f'ds_read_b128 {v(LL+4,4)}, v{T+1} offset:4096')
    k('s_waitcnt lgkmcnt(0)')
    k(f'v_add_f32 v{LL}, v{LL}, v{LL+4}')
    for i in range(16): k(f'v_add_f32 v{O+i}, v{O+i}, v{O+16+i}')
    FIN, SLOW = k.label('fin'), k.label('slow')
    k(f'v_cmp_nge_f32 vcc, {f2u(2.0**64)}, v{LL}\ns_cbranch_vccnz {SLOW}')
    k(FIN + ':')
    k(f'v_rcp_f32 v{LL}, v{LL}\ns_nop 0')
    for i in range(16): k(f'v_mul_f32 v{O+i}, v{O+i}, v{LL}')
    for i in range(8): k(f'v_cvt_pk_bf16_f32 v{PP+i}, v{O+2*i}, v{O+2*i+1}')
    k('s_lshl_b32 s21, s22, 16\ns_lshl_b32 s23, s17, 11\ns_add_u32 s21, s21, s23')
    for s_ in range(2): k(f'buffer_store_dwordx4 {v(PP+4*s_,4)}, v{VA}, s[12:15], s21 offen offset:{s_*1024}')
    k('s_endpgm')
    k(SLOW + ':')
    k(f's_waitcnt vmcnt(0)\nv_mov_b32 v{T+2}, 0xff800000\ns_mov_b32 s28, s27\ns_mov_b32 s30, 64')
    L1 = k.label('s1')
    k(L1 + ':')
    for x in ldK(0): k(x)
    k('s_waitcnt vmcnt(0)')
    k(f'v_mfma_f32_32x32x16_bf16 {v(S,16)}, {v(KB,4)}, {v(Q,4)}, 0\nv_mfma_f32_32x32x16_bf16 {v(S,16)}, {v(KB+4,4)}, {v(Q+4,4)}, {v(S,16)}\ns_nop 15')
    rowmax(S, T)
    k(f'v_max_f32 v{T+2}, v{T+2}, v{T}')
    k(f's_sub_u32 s30, s30, 1\ns_cmp_lg_u32 s30, 0\ns_cbranch_scc1 {L1}')
    xhalf_max(T + 2, T + 1)
    for i in range(16): k(f'v_sub_f32 v{NM+i}, 0, v{T+2}\nv_mov_b32 v{O+i}, 0')
    for i in range(4): k(f'v_mov_b32 v{LL+i}, 0')
    k(f's_mov_b32 s28, s27\ns_add_u32 s29, s27, {4*MB}\ns_mov_b32 s30, 64')
    L2 = k.label('s2')
    k(L2 + ':')
    for x in ldK(0) + ldV(0): k(x)
    k('s_waitcnt vmcnt(0)')
    for x in qk(0, 0): k(x)
    k('s_nop 15')
    for i in range(16): k(f'v_exp_f32 v{S+i}, v{S+i}')
    k('s_nop 0')
    for i in range(8): k(f'v_cvt_pk_bf16_f32 v{PP+i}, v{S+2*i}, v{S+2*i+1}')
    k('s_nop 1')
    for x in pv(0, 0) + sm(0): k(x)
    k('s_nop 15')
    k(f's_sub_u32 s30, s30, 1\ns_cmp_lg_u32 s30, 0\ns_cbranch_scc1 {L2}')
    k(f's_branch {FIN}')
    return k
```

```python
from asmlib import *
MB = 1 << 20
WS_XN, WS_Q, WS_K, WS_V, WS_O, WS_H, WS_HN, WS_HH = 0, 4*MB, 8*MB, 12*MB, 16*MB, 20*MB, 24*MB, 28*MB
WS_ST = 44*MB
ARG_X, ARG_WQKV, ARG_WO, ARG_BX, ARG_WG, ARG_WU, ARG_WD, ARG_OUT, ARG_DBG, ARG_WS = [8*i for i in range(10)]
LOG2E = 1.4426950408889634
import struct
def f2u(x): return '0x%08x' % struct.unpack('<I', struct.pack('<f', x))[0]

def guard(k, n):
    L = k.label('go')
    k(f's_cmp_lt_u32 s2, {n}\ns_cbranch_scc1 {L}\ns_endpgm\n{L}:')

def srd_off(k, d, base, off, nbytes):
    k(f's_add_u32 s{d}, s{base}, {off}')
    k(f's_addc_u32 s{d+1}, s{base+1}, 0')
    k(f's_and_b32 s{d+1}, s{d+1}, 0xffff')
    k(f's_mov_b32 s{d+2}, {nbytes}')
    k(f's_mov_b32 s{d+3}, 0x00020000')

def interleave(k, mf, fill, lead=0):
    n = len(mf); m = len(fill)
    for i in range(n):
        k(mf[i])
        for x in fill[i * m // n:(i + 1) * m // n]: k(x)
```

```python
from common import *
def ln_kernel(name, natural_src):
    k = K(name, 64, 512, 4096, vgpr=128, sgpr=40)
    guard(k, 64)
    k(f's_load_dwordx2 s[4:5], s[0:1], {ARG_WS}')
    if natural_src: k(f's_load_dwordx2 s[6:7], s[0:1], {ARG_X}')
    k('v_and_b32 v1, 63, v0\nv_lshrrev_b32 v2, 6, v0')
    k('v_and_b32 v3, 31, v1\nv_lshrrev_b32 v4, 5, v1')
    k('s_waitcnt lgkmcnt(0)')
    if natural_src:
        srd_off(k, 8, 6, 0, 4*MB); srd_off(k, 12, 4, WS_XN, 4*MB)
    else:
        srd_off(k, 8, 4, WS_H, 4*MB); srd_off(k, 12, 4, WS_HN, 4*MB)
    k('s_lshl_b32 s3, s2, 16')
    k('v_lshlrev_b32 v6, 13, v2\nv_lshl_add_u32 v6, v1, 4, v6')
    if natural_src:
        k('v_lshlrev_b32 v5, 11, v3\nv_lshl_add_u32 v5, v4, 4, v5\nv_lshl_add_u32 v5, v2, 8, v5')
        for c in range(8): k(f'buffer_load_dwordx4 v[{16+4*c}:{19+4*c}], v5, s[8:11], s3 offen offset:{32*c}')
    else:
        k('v_add_u32 v5, 0x1000, v6')
        for c in range(8): k(f'buffer_load_dwordx4 v[{16+4*c}:{19+4*c}], v{6 if c < 4 else 5}, s[8:11], s3 offen offset:{1024*(c%4)}')
    k('v_lshlrev_b32 v8, 6, v3\nv_lshl_add_u32 v7, v2, 3, v8\nv_lshl_add_u32 v7, v4, 2, v7')
    k('s_waitcnt vmcnt(0)')
    for i in range(32):
        k(f'v_lshlrev_b32 v{64+2*i}, 16, v{16+i}\nv_and_b32 v{65+2*i}, 0xffff0000, v{16+i}')
    def reduce(src, off, dst):
        k(f'ds_write_b32 v7, v{src} offset:{off}\ns_waitcnt lgkmcnt(0)\ns_barrier')
        for j in range(4): k(f'ds_read_b128 v[{48+4*j}:{51+4*j}], v8 offset:{off+16*j}')
        k('s_waitcnt lgkmcnt(0)')
        for j in range(8): k(f'v_add_f32 v{48+j}, v{48+j}, v{56+j}')
        for j in range(4): k(f'v_add_f32 v{48+j}, v{48+j}, v{52+j}')
        k(f'v_add_f32 v48, v48, v50\nv_add_f32 v49, v49, v51\nv_add_f32 v{dst}, v48, v49')
    k('v_add_f32 v9, v64, v65\nv_add_f32 v10, v66, v67')
    for i in range(4, 64, 2): k(f'v_add_f32 v9, v9, v{64+i}\nv_add_f32 v10, v10, v{65+i}')
    k('v_add_f32 v9, v9, v10')
    reduce(9, 0, 11)
    k(f'v_mul_f32 v11, {f2u(1/1024)}, v11')
    for i in range(64): k(f'v_sub_f32 v{64+i}, v{64+i}, v11')
    k('v_mul_f32 v9, v64, v64\nv_mul_f32 v10, v65, v65')
    for i in range(2, 64, 2): k(f'v_fmac_f32 v9, v{64+i}, v{64+i}\nv_fmac_f32 v10, v{65+i}, v{65+i}')
    k('v_add_f32 v9, v9, v10')
    reduce(9, 2048, 12)
    k(f'v_mov_b32 v13, {f2u(1e-5)}\nv_fmac_f32 v13, {f2u(1/1024)}, v12\nv_rsq_f32 v13, v13\ns_nop 0')
    for i in range(64): k(f'v_mul_f32 v{64+i}, v{64+i}, v13')
    for i in range(32): k(f'v_cvt_pk_bf16_f32 v{16+i}, v{64+2*i}, v{65+2*i}')
    k('v_add_u32 v5, 0x1000, v6')
    for c in range(8): k(f'buffer_store_dwordx4 v[{16+4*c}:{19+4*c}], v{6 if c < 4 else 5}, s[12:15], s3 offen offset:{1024*(c%4)}')
    return k
```

```python
from common import *
class T1:
    pass
def t1_mainloop(k, c):
    FS = (c.MT + c.NT) * 4
    def xf(s_, mt): return a_(s_ * FS + mt * 4, 4)
    def wf(s_, nt): return s_ * FS + c.MT * 4 + nt * 4
    def reads(slot, j, s_):
        r = []
        xs = [f'ds_read_b128 {xf(s_, mt)}, v{c.vX[slot]} offset:{c.xoff(mt, j)}' for mt in range(c.MT)]
        ws = []
        for nt in range(c.NT):
            for hf in range(2):
                ws.append(f'ds_read_b64_tr_b16 {a_(wf(s_, nt) + 2 * hf, 2)}, v{c.vW[slot]} offset:{c.woff(nt, j, hf)}')
        return xs[:1] + ws[:2] + xs[1:] + ws[2:]
    def mfmas(s_, first):
        r = []
        for nt in range(c.NT):
            for mt in range(c.MT):
                d = v((nt * c.MT + mt) * 16, 16)
                A, B = a_(wf(s_, nt), 4), xf(s_, mt)
                if c.swap(nt): A, B = B, A
                r.append(f'v_mfma_f32_32x32x16_bf16 {d}, {A}, {B}, {"0" if first else d}')
        return r
    def stage(slot, dma, wait, first=False):
        d = c.dma((slot - 1) % c.NST) if dma else []
        nd = max(1, c.SUB - 1)
        for j in range(c.SUB):
            s_ = j & 1
            k('s_waitcnt lgkmcnt(0)')
            mf = mfmas(s_, first and j == 0)
            if j < c.SUB - 1:
                rd = reads(slot, j + 1, s_ ^ 1)
                dd = d[j * len(d) // nd:(j + 1) * len(d) // nd]
                fill = []
                n = max(len(rd), len(dd))
                for i in range(n):
                    fill += rd[i * len(rd) // n:(i + 1) * len(rd) // n]
                    fill += dd[i * len(dd) // n:(i + 1) * len(dd) // n]
                if dma and j == c.SUB - 2: fill.append(c.adv)
                interleave(k, mf, fill)
            elif wait is None:
                interleave(k, mf, [])
            else:
                k(mf[0])
                k(f's_waitcnt vmcnt({wait * c.G})\ns_barrier')
                interleave(k, mf[1:], reads((slot + 1) % c.NST, 0, s_ ^ 1))
    assert c.SUB % 2 == 0
    for t in range(c.NST - 1):
        for x in c.dma(t): k(x)
        k(c.adv)
    k(f's_waitcnt vmcnt({(c.NST - 2) * c.G})\ns_barrier')
    for x in reads(0, 0, 0): k(x)
    for i in range(c.MT * c.NT * 16): k(f'v_mov_b32 v{i}, 0')
    cnt = c.NSTAGES - c.NST + 1
    iters = cnt // c.NST
    L = k.label('loop')
    k(f's_mov_b32 s{c.sCnt}, {iters}')
    k(L + ':')
    for sl in range(c.NST): stage(sl, True, c.NST - 2)
    k(f's_sub_u32 s{c.sCnt}, s{c.sCnt}, 1\ns_cmp_lg_u32 s{c.sCnt}, 0\ns_cbranch_scc1 {L}')
    for t in range(iters * c.NST, c.NSTAGES):
        stage(t % c.NST, t < cnt, None if t == c.NSTAGES - 1 else min(c.NST - 2, c.NSTAGES - 2 - t))
    k('s_nop 15')

def lane_setup(k, vl, sw):
    k(f'v_lshrrev_b32 v{vl}, 6, v0\ns_nop 0\nv_readfirstlane_b32 s{sw}, v{vl}\nv_and_b32 v{vl}, 63, v0')

def tr_lane_terms(k, vl, vg, vr, vc):
    k(f'v_lshrrev_b32 v{vg}, 4, v{vl}\nv_bfe_u32 v{vr}, v{vl}, 2, 2')
    k(f'v_and_b32 v{vc}, 1, v{vl}\nv_lshlrev_b32 v{vc}, 1, v{vc}\nv_bfe_u32 v255, v{vl}, 1, 1\nv_or_b32 v{vc}, v{vc}, v255')

def qkv_kernel():
    c = T1(); c.SUB, c.NST, c.NSTAGES, c.MT, c.NT, c.G = 4, 4, 16, 2, 3, 10
    c.SB = 40960; XB = 16384
    k = K('qkv_kernel', 256, 256, c.SB * c.NST, vgpr=256 + 40, sgpr=48, accum=256)
    guard(k, 256)
    k(f's_load_dwordx2 s[4:5], s[0:1], {ARG_WS}\ns_load_dwordx2 s[6:7], s[0:1], {ARG_WQKV}')
    VL = 200; SW = 16
    lane_setup(k, VL, SW)
    k('s_and_b32 s17, s2, 1\ns_lshl_b32 s17, s17, 3\ns_bfe_u32 s18, s2, 0x30003\ns_add_u32 s17, s17, s18')
    k('s_bfe_u32 s18, s2, 0x20001\ns_lshl_b32 s18, s18, 2\ns_lshr_b32 s19, s2, 6\ns_add_u32 s18, s18, s19')
    k('s_and_b32 s20, s16, 1\ns_lshr_b32 s21, s16, 1')
    k('s_waitcnt lgkmcnt(0)')
    srd_off(k, 8, 4, WS_XN, 4*MB); srd_off(k, 12, 6, 0, 6*MB)
    vXd = 204
    k(f's_lshl_b32 s22, s17, 2\ns_add_u32 s22, s22, s{SW}\ns_lshl_b32 s22, s22, 16')
    k(f'v_lshlrev_b32 v{vXd}, 4, v{VL}\nv_add_u32 v{vXd}, s22, v{vXd}')
    vWd = 205
    k(f'v_lshrrev_b32 v220, 3, v{VL}\nv_and_b32 v221, 7, v{VL}\nv_bfe_u32 v222, v{VL}, 4, 1\nv_lshlrev_b32 v222, 2, v222\nv_xor_b32 v221, v221, v222')
    k(f'v_mul_u32_u24 v220, 6144, v220\nv_lshl_add_u32 v220, v221, 4, v220')
    k(f's_mul_i32 s22, s{SW}, {16*6144}\ns_lshl_b32 s23, s18, 7\ns_add_u32 s22, s22, s23\nv_add_u32 v220, s22, v220')
    for kg in range(2):
        for p in range(3): k(f'v_add_u32 v{vWd+kg*3+p}, {kg*8*6144 + p*2048}, v220')
    k(f's_lshl_b32 s24, s{SW}, 12')
    k(f's_mul_i32 s25, s{SW}, 6144\ns_add_u32 s25, s25, {XB}')
    k('s_mov_b32 s26, 0\ns_mov_b32 s27, 0')
    def dma(slot):
        r = []
        for j in range(4):
            pre = f's_add_u32 m0, s24, {slot*c.SB}\ns_nop 0\n' if j == 0 else ''
            r.append(pre + f'buffer_load_dwordx4 v{vXd}, s[8:11], s26 offen offset:{j*1024} lds')
        for j in range(6):
            r.append(f's_add_u32 m0, s25, {slot*c.SB + j*1024}\ns_nop 0\nbuffer_load_dwordx4 v{vWd+j}, s[12:15], s27 offen lds')
        return r
    c.dma = dma
    c.adv = f's_add_u32 s26, s26, 4096\ns_add_u32 s27, s27, {64*6144}'
    c.vX = [212 + i for i in range(4)]; c.vW = [216 + i for i in range(4)]
    k(f's_lshl_b32 s22, s21, 13\nv_lshlrev_b32 v220, 4, v{VL}\nv_add_u32 v220, s22, v220')
    for sl in range(4): k(f'v_add_u32 v{c.vX[sl]}, {sl*c.SB}, v220')
    tr_lane_terms(k, VL, 220, 221, 222)
    k('v_and_b32 v223, 1, v220\nv_lshlrev_b32 v223, 1, v223\ns_lshl_b32 s22, s20, 2\nv_add_u32 v223, s22, v223')
    k('v_lshrrev_b32 v224, 1, v222\nv_add_u32 v223, v223, v224\nv_lshrrev_b32 v224, 1, v221\nv_lshlrev_b32 v224, 2, v224\nv_xor_b32 v223, v223, v224')
    k('v_lshlrev_b32 v223, 4, v223\nv_and_b32 v224, 1, v222\nv_lshl_add_u32 v223, v224, 3, v223\nv_lshl_add_u32 v223, v221, 7, v223')
    k('v_lshrrev_b32 v224, 1, v220\nv_mul_u32_u24 v224, 3072, v224\nv_add_u32 v223, v223, v224')
    for sl in range(4): k(f'v_add_u32 v{c.vW[sl]}, {sl*c.SB + XB}, v223')
    c.xoff = lambda mt, j: (mt * 4 + j) * 1024
    c.woff = lambda nt, j, hf: j * 6144 + nt * 1024 + hf * 512
    c.swap = lambda nt: nt == 2
    c.sCnt = 28
    t1_mainloop(k, c)
    srd_off(k, 8, 4, WS_Q, 12*MB)
    k('s_lshl_b32 s22, s18, 1\ns_add_u32 s22, s22, s20\ns_lshl_b32 s22, s22, 6\ns_lshl_b32 s23, s17, 2\ns_add_u32 s22, s22, s23\ns_lshl_b32 s23, s21, 1\ns_add_u32 s22, s22, s23\ns_lshl_b32 s22, s22, 11')
    k(f'v_lshlrev_b32 v220, 4, v{VL}')
    k(f's_mov_b32 s29, {f2u(32 ** -0.5 * LOG2E)}')
    for i in range(32): k(f'v_mul_f32 v{i}, s29, v{i}')
    for nt in range(3):
        for mt in range(2):
            b = (nt * 2 + mt) * 16; o = 100 + (nt * 2 + mt) * 8
            for i in range(8): k(f'v_cvt_pk_bf16_f32 v{o+i}, v{b+2*i}, v{b+2*i+1}')
            for s_ in range(2): k(f'buffer_store_dwordx4 v[{o+4*s_}:{o+4*s_+3}], v220, s[8:11], s22 offen offset:{mt*2048 + s_*1024}')
        if nt < 2: k(f's_add_u32 s22, s22, {4*MB}')
    return k

def gateup_kernel():
    c = T1(); c.SUB, c.NST, c.NSTAGES, c.MT, c.NT, c.G = 2, 4, 32, 2, 7, 8
    XB = 16384; UP = 7168 + 128; c.SB = 30976; DUMMY = c.SB * c.NST
    k = K('gateup_kernel', 256, 256, DUMMY + 1024, vgpr=256 + 72, sgpr=48, accum=256)
    guard(k, 256)
    k(f's_load_dwordx2 s[4:5], s[0:1], {ARG_WS}\ns_load_dwordx4 s[36:39], s[0:1], {ARG_WG}')
    VL = 224; SW = 16
    lane_setup(k, VL, SW)
    k('s_and_b32 s17, s2, 1\ns_lshl_b32 s17, s17, 2\ns_bfe_u32 s18, s2, 0x20003\ns_add_u32 s17, s17, s18')
    k('s_bfe_u32 s18, s2, 0x20001\ns_lshl_b32 s18, s18, 3\ns_lshr_b32 s19, s2, 5\ns_add_u32 s18, s18, s19')
    k('s_waitcnt lgkmcnt(0)')
    vD = 225
    LW, LE = k.label('w'), k.label('e')
    k(f's_cmp_lt_u32 s{SW}, 2\ns_cbranch_scc1 {LW}')
    srd_off(k, 8, 4, WS_HN, 4*MB)
    k(f's_sub_u32 s22, s{SW}, 2\ns_lshl_b32 s24, s22, 13\ns_lshl_b32 s22, s22, 2\ns_lshl_b32 s23, s17, 3\ns_add_u32 s22, s22, s23\ns_lshl_b32 s22, s22, 16')
    k(f'v_lshlrev_b32 v240, 4, v{VL}\nv_add_u32 v240, s22, v240')
    for i in range(8): k(f'v_add_u32 v{vD+i}, {(i>>1)*65536 + (i&1)*1024}, v240')
    k(f's_mov_b32 s27, 2048\ns_add_u32 s25, s24, {7*1024}\ns_mov_b32 s30, {c.SB}\ns_branch {LE}')
    k(LW + ':')
    k(f's_cmp_eq_u32 s{SW}, 0\ns_cselect_b32 s8, s36, s38\ns_cselect_b32 s9, s37, s39\ns_and_b32 s9, s9, 0xffff\ns_mov_b32 s10, {1024*7168}\ns_mov_b32 s11, 0x00020000')
    k(f's_mul_i32 s24, s{SW}, {UP}\ns_add_u32 s24, s24, {XB}\ns_mul_i32 s22, s18, 224')
    for i in range(7):
        k(f'v_add_u32 v240, {i*64}, v{VL}\nv_mul_u32_u24 v241, 4682, v240\nv_lshrrev_b32 v241, 16, v241\nv_mul_u32_u24 v242, 14, v241\nv_sub_u32 v242, v240, v242')
        k(f'v_mul_u32_u24 v241, 7168, v241\nv_lshl_add_u32 v241, v242, 4, v241\nv_add_u32 v{vD+i}, s22, v241')
    k(f'v_mov_b32 v{vD+7}, 0x7f000000\ns_mov_b32 s27, {32*7168}\ns_mov_b32 s25, {DUMMY}\ns_mov_b32 s30, 0')
    k(LE + ':')
    k('s_mov_b32 s26, 0')
    for sl in range(4): k(f's_mul_i32 s{31+sl}, s30, {sl}\ns_add_u32 s{31+sl}, s{31+sl}, s25')
    def dma(slot):
        r = [f's_add_u32 m0, s24, {slot*c.SB + j*1024}\ns_nop 0\nbuffer_load_dwordx4 v{vD+j}, s[8:11], s26 offen lds' for j in range(7)]
        r.append(f's_mov_b32 m0, s{31+slot}\ns_nop 0\nbuffer_load_dwordx4 v{vD+7}, s[8:11], s26 offen lds')
        return r
    c.dma = dma; c.adv = 's_add_u32 s26, s26, s27'
    c.vX = [233 + i for i in range(4)]; c.vW = [244 + i for i in range(4)]
    k(f's_lshl_b32 s22, s{SW}, 12\nv_lshlrev_b32 v240, 4, v{VL}\nv_add_u32 v240, s22, v240')
    for sl in range(4): k(f'v_add_u32 v{c.vX[sl]}, {sl*c.SB}, v240')
    tr_lane_terms(k, VL, 240, 241, 242)
    k(f'v_and_b32 v243, 1, v240\nv_mul_u32_u24 v243, {UP}, v243\nv_lshrrev_b32 v240, 1, v240\nv_lshl_add_u32 v240, v240, 3, v241\nv_mul_u32_u24 v240, 224, v240')
    k('v_add_u32 v243, v243, v240\nv_lshl_add_u32 v243, v242, 3, v243')
    for sl in range(4): k(f'v_add_u32 v{c.vW[sl]}, {sl*c.SB + XB}, v243')
    c.xoff = lambda mt, j: (mt * 2 + j) * 1024
    c.woff = lambda nt, j, hf: (j * 16 + hf * 4) * 224 + nt * 32
    c.swap = lambda nt: False
    c.sCnt = 28
    t1_mainloop(k, c)
    srd_off(k, 8, 4, WS_HH, 64*224*1024)
    k(f's_lshl_b32 s22, s17, 3\ns_lshl_b32 s23, s{SW}, 1\ns_add_u32 s22, s22, s23\ns_mul_i32 s22, s22, 224\ns_mul_i32 s23, s18, 7\ns_add_u32 s22, s22, s23\ns_lshl_b32 s22, s22, 10')
    k(f's_add_u32 s23, s22, {224*1024}')
    k(f'v_lshlrev_b32 v240, 4, v{VL}\nv_add_u32 v241, 0x1000, v240')
    k(f's_mov_b32 s29, {f2u(-LOG2E)}')
    for nt in range(7):
        for mt in range(2):
            b = (nt * 2 + mt) * 16
            for i in range(8): k(f'v_mul_f32 v{b+i}, s29, v{b+i}')
            for i in range(8): k(f'v_exp_f32 v{b+i}, v{b+i}')
            for i in range(8): k(f'v_add_f32 v{b+i}, 1.0, v{b+i}')
            for i in range(8): k(f'v_rcp_f32 v{b+i}, v{b+i}')
            for i in range(8): k(f'v_mul_f32 v{b+8+i}, v{b+i}, v{b+8+i}')
            for i in range(4): k(f'v_cvt_pk_bf16_f32 v{b+i}, v{b+8+2*i}, v{b+9+2*i}')
            k(f'buffer_store_dwordx4 v[{b}:{b+3}], v{240 + nt//4}, s[8:11], s{22+mt} offen offset:{(nt%4)*1024}')
    return k
```

```python
from common import *
from t1 import lane_setup, tr_lane_terms
def t2_kernel(name, KT, ws_x, arg_w, down, P=7):
    R = P + 1; n = KT // 4
    RED = 4 * R * 2048
    k = K(name, 256, 256, RED + 96 * 1024, vgpr=192 + R * 16 + 16, sgpr=48, accum=192)
    guard(k, 256)
    k(f's_load_dwordx2 s[4:5], s[0:1], {ARG_WS}\ns_load_dwordx2 s[6:7], s[0:1], {arg_w}\ns_load_dwordx2 s[36:37], s[0:1], {ARG_OUT if down else ARG_X}')
    VL = 160; SW = 16
    k(f'v_lshrrev_b32 v{VL}, 6, v0\ns_nop 0\nv_readfirstlane_b32 s{SW}, v{VL}\nv_and_b32 v{VL}, 63, v0')
    k('s_and_b32 s17, s2, 3\ns_lshl_b32 s17, s17, 2\ns_bfe_u32 s18, s2, 0x20003\ns_add_u32 s17, s17, s18')
    k('s_bfe_u32 s18, s2, 0x10002\ns_lshl_b32 s18, s18, 3\ns_lshr_b32 s19, s2, 5\ns_add_u32 s18, s18, s19')
    k('s_waitcnt lgkmcnt(0)')
    srd_off(k, 8, 4, ws_x, 64 * KT * 1024); srd_off(k, 12, 6, 0, KT * 16 * 2048)
    srd_off(k, 40, 4, WS_H, 4 * MB); srd_off(k, 44, 36, 0, 4 * MB)
    k(f's_lshl_b32 s22, s17, 2\ns_add_u32 s22, s22, s{SW}\ns_lshl_b32 s22, s22, 16')
    k(f's_lshl_b32 s23, s18, 7\ns_add_u32 s23, s23, s22\nv_and_b32 v161, 31, v{VL}\nv_lshlrev_b32 v161, 11, v161\nv_lshrrev_b32 v163, 5, v{VL}\nv_lshl_add_u32 v161, v163, 4, v161\nv_add_u32 v161, s23, v161')
    k(f's_lshl_b32 s23, s18, 12\ns_add_u32 s23, s23, s22\nv_lshlrev_b32 v162, 4, v{VL}\nv_add_u32 v162, s23, v162')
    for q in range(4):
        if down: k(f'buffer_load_dwordx4 v[{128+4*q}:{131+4*q}], v162, s[40:43], 0 offen offset:{q*1024}')
        else:    k(f'buffer_load_dwordx4 v[{128+4*q}:{131+4*q}], v161, s[44:47], 0 offen offset:{q*32}')
    for s_ in range(4):
        k(f's_add_u32 s22, s{SW}, {s_}\ns_and_b32 s22, s22, 3\ns_lshl_b32 s23, s17, 2\ns_add_u32 s22, s22, s23\ns_mul_i32 s22, s22, {KT}\ns_add_u32 s22, s22, s{SW}\ns_lshl_b32 s22, s22, 10')
        k(f'v_lshlrev_b32 v{164+s_}, 4, v{VL}\nv_add_u32 v{164+s_}, s22, v{164+s_}')
    k(f'v_lshrrev_b32 v170, 3, v{VL}\nv_and_b32 v171, 7, v{VL}\nv_bfe_u32 v172, v{VL}, 4, 1\nv_lshlrev_b32 v172, 2, v172\nv_xor_b32 v171, v171, v172')
    k(f'v_lshlrev_b32 v170, 11, v170\nv_lshl_add_u32 v170, v171, 4, v170\ns_lshl_b32 s22, s{SW}, 15\ns_lshl_b32 s23, s18, 7\ns_add_u32 s22, s22, s23')
    k('v_add_u32 v168, s22, v170\nv_add_u32 v169, 0x4000, v168')
    k(f's_mul_i32 s24, s{SW}, {R*2048}\ns_mov_b32 s26, 0\ns_mov_b32 s27, 0')
    k(f'v_lshrrev_b32 v170, 4, v{VL}\nv_bfe_u32 v171, v{VL}, 2, 2\nv_and_b32 v172, 1, v{VL}\nv_bfe_u32 v175, v{VL}, 1, 1')
    k('v_and_b32 v173, 1, v170\nv_lshl_add_u32 v173, v173, 1, v172\nv_lshrrev_b32 v174, 1, v171\nv_lshlrev_b32 v174, 2, v174\nv_xor_b32 v173, v173, v174')
    k('v_lshlrev_b32 v173, 4, v173\nv_lshl_add_u32 v173, v175, 3, v173\nv_lshl_add_u32 v173, v171, 7, v173\nv_lshrrev_b32 v170, 1, v170\nv_lshl_add_u32 v173, v170, 10, v173')
    k('v_add_u32 v173, s24, v173\nv_xor_b32 v174, 64, v173')
    XA = lambda r, s_: a_(r * 16 + s_ * 4, 4)
    WA = lambda st, nt: R * 16 + st * 8 + nt * 4
    def loads(r):
        l = [f's_add_u32 m0, s24, {r*2048 + b*1024}\ns_nop 0\nbuffer_load_dwordx4 v{168+b}, s[12:15], s27 offen lds' for b in range(2)]
        l += [f'buffer_load_dwordx4 {XA(r, s_)}, v{164+s_}, s[8:11], s26 offen' for s_ in range(4)]
        l[-1] += f'\ns_add_u32 s26, s26, 4096\ns_add_u32 s27, s27, {64*2048}'
        return l
    def reads(r, st):
        return [f'ds_read_b64_tr_b16 {a_(WA(st, nt) + 2*hf, 2)}, v{173+nt} offset:{r*2048 + hf*512}' for nt in range(2) for hf in range(2)]
    def sub(i, ld, wait):
        r = i % R; st = i & 1
        mf = [f'v_mfma_f32_32x32x16_bf16 {v((s_*2+nt)*16, 16)}, {a_(WA(st, nt), 4)}, {XA(r, s_)}, {v((s_*2+nt)*16, 16)}' for s_ in range(4) for nt in range(2)]
        k('s_waitcnt lgkmcnt(0)')
        k(mf[0])
        fill = []
        if wait is not None:
            k(f's_waitcnt vmcnt({wait*6})')
            fill += reads((i + 1) % R, st ^ 1)
        if ld: fill += loads((i + P) % R)
        interleave(k, mf[1:], fill)
    for i in range(P):
        for x in loads(i): k(x)
    for i in range(128): k(f'v_mov_b32 v{i}, 0')
    k(f's_waitcnt vmcnt({(P-1)*6})')
    for x in reads(0, 0): k(x)
    cnt = n - P; iters = cnt // R
    L = k.label('loop')
    k(f's_mov_b32 s28, {iters}\n{L}:')
    for i in range(R): sub(i, True, P - 2)
    k(f's_sub_u32 s28, s28, 1\ns_cmp_lg_u32 s28, 0\ns_cbranch_scc1 {L}')
    for i in range(iters * R, n):
        sub(i, i < cnt, None if i == n - 1 else min(P - 2, n - 2 - i))
    k('s_nop 15')
    for s_ in range(1, 4):
        k(f's_add_u32 s22, s{SW}, {s_}\ns_and_b32 s22, s22, 3\ns_mul_i32 s22, s22, {3*8192}\ns_add_u32 s22, s22, {RED + (s_-1)*8192}')
        k(f'v_lshlrev_b32 v170, 4, v{VL}\nv_add_u32 v170, s22, v170')
        for q in range(8): k(f'ds_write_b128 v170, v[{s_*32+4*q}:{s_*32+4*q+3}] offset:{q*1024}')
    k(f's_mul_i32 s22, s{SW}, {3*8192}\ns_add_u32 s22, s22, {RED}\nv_lshlrev_b32 v170, 4, v{VL}\nv_add_u32 v170, s22, v170')
    k('s_waitcnt lgkmcnt(0)\ns_barrier')
    for q in range(24): k(f'ds_read_b128 v[{32+4*q}:{35+4*q}], v170 offset:{q*1024}')
    for q in range(16):
        k(f'v_lshlrev_b32 v144, 16, v{128+q}\nv_and_b32 v145, 0xffff0000, v{128+q}\nv_add_f32 v{2*q}, v{2*q}, v144\nv_add_f32 v{2*q+1}, v{2*q+1}, v145')
    k('s_waitcnt lgkmcnt(0)')
    for i in range(32): k(f'v_add_f32 v{32+i}, v{32+i}, v{64+i}\nv_add_f32 v{i}, v{i}, v{96+i}')
    for i in range(32): k(f'v_add_f32 v{i}, v{i}, v{32+i}')
    for i in range(16): k(f'v_cvt_pk_bf16_f32 v{128+i}, v{2*i}, v{2*i+1}')
    for q in range(4):
        if down: k(f'buffer_store_dwordx4 v[{128+4*q}:{131+4*q}], v161, s[44:47], 0 offen offset:{q*32}')
        else:    k(f'buffer_store_dwordx4 v[{128+4*q}:{131+4*q}], v162, s[40:43], 0 offen offset:{q*1024}')
    return k
```

```python
import sys; sys.path.insert(0, 'gen')
from common import *
from ln import ln_kernel
from t1 import qkv_kernel, gateup_kernel
from t2 import t2_kernel
from attn import attn_kernel
NAME = 'sequential_preLN__softmax_full_mha__glu_gated_glu__prompt'
hdr = ''.join(l for l in open(f'cdna_kernels/{NAME}.s.ref') if l.startswith(';') and '@launch' not in l and 'Override' not in l and 'grid=ceil' not in l)
ks = [ln_kernel('ln1_kernel', True), qkv_kernel(), attn_kernel(), t2_kernel('proj_kernel', 64, WS_O, ARG_WO, False),
      ln_kernel('ln2_kernel', False), gateup_kernel(), t2_kernel('down_kernel', 224, WS_HH, ARG_WD, True)]
out = sys.argv[1] if len(sys.argv) > 1 else f'cdna_kernels/{NAME}.s'
open(out, 'w').write(build(ks, header=hdr))
```

```python
from common import *
def attn_kernel():
    X = os.environ.get('AX', '')
    k = K('attn_kernel', 256, 512, 131072, vgpr=192, sgpr=56)
    guard(k, 256)
    stamp(k, 0)
    k(f's_load_dwordx2 s[4:5], s[0:1], {ARG_WS}')
    Q, KB, VB, S, PP, O, LL, NM, SEL = 0, 16, 32, 48, 80, 96, 128, 136, 168
    VL, VA, VC, VN, T = 172, 173, 174, 175, 176
    k(f'v_lshrrev_b32 v{VL}, 6, v0\ns_nop 0\nv_readfirstlane_b32 s16, v{VL}\nv_and_b32 v{VL}, 63, v0\nv_lshlrev_b32 v{VA}, 4, v{VL}')
    k('s_and_b32 s17, s2, 7\ns_lshl_b32 s17, s17, 2\ns_bfe_u32 s18, s2, 0x20003\ns_add_u32 s17, s17, s18\ns_lshr_b32 s18, s2, 5')
    k('s_lshl_b32 s24, s17, 17')
    k(f's_add_u32 s27, s24, {4*MB}')
    HELP = k.label('help')
    k(f's_cmp_ge_u32 s16, 4\ns_cbranch_scc1 {HELP}')
    k('s_lshl_b32 s21, s18, 3\ns_lshl_b32 s22, s16, 1\ns_add_u32 s22, s21, s22')
    k('s_lshl_b32 s25, s22, 11\ns_add_u32 s25, s25, s24')
    k('s_waitcnt lgkmcnt(0)')
    srd_off(k, 8, 4, WS_Q, 12 * MB)
    def ldK(b): return [f'buffer_load_dwordx4 v[{KB+b*8+s_*4}:{KB+b*8+s_*4+3}], v{VA}, s[8:11], s28 offen offset:{s_*1024}' + ('\ns_add_u32 s28, s28, 2048' if s_ else '') for s_ in range(2)]
    def ldV(b): return [f'buffer_load_dwordx4 v[{VB+b*8+s_*4}:{VB+b*8+s_*4+3}], v{VA}, s[8:11], s29 offen offset:{s_*1024}' + ('\ns_add_u32 s29, s29, 2048' if s_ else '') for s_ in range(2)]
    def rdK(t): return [f'ds_read_b128 {v(KB+(t&1)*8+s_*4, 4)}, v{VC if t < 8 else VN} offset:{(t&7)*4096 + s_*1024}' for s_ in range(2)]
    def rdV(t): return [f'ds_read_b128 {v(VB+(t&1)*8+s_*4, 4)}, v{VC if t < 8 else VN} offset:{(t&7)*4096 + 2048 + s_*1024}' for s_ in range(2)]
    for j in range(4): k(f'buffer_load_dwordx4 v[{Q+j*4}:{Q+j*4+3}], v{VA}, s[8:11], s25 offen offset:{j*1024}')
    srd_off(k, 12, 4, WS_O, 4 * MB)
    k(f'v_and_b32 v{T}, 3, v{VL}\nv_bfe_u32 v{T+1}, v{VL}, 2, 1\nv_bfe_u32 v{T+2}, v{VL}, 4, 1\nv_xor_b32 v{T+1}, v{T+1}, v{T+2}\nv_or_b32 v{T}, v{T}, v{T+1}')
    k(f'v_cmp_eq_u32 vcc, 0, v{T}\nv_mov_b32 v{T+1}, 0x3f803f80\ns_nop 1\nv_cndmask_b32 v{SEL}, 0, v{T+1}, vcc')
    for i in range(1, 4): k(f'v_mov_b32 v{SEL+i}, v{SEL}')
    for i in range(40): k(f'v_mov_b32 v{O+i}, 0')
    for i in range(8): k(f'v_mov_b32 v{PP+8+i}, 0\nv_mov_b32 v{VB+8+i}, 0')
    k(f'v_mov_b32 v{VC}, v{VA}\nv_add_u32 v{VN}, 0x8000, v{VA}')
    def rowmax(src, dst):
        k(f'v_max3_f32 v{dst}, v{src}, v{src+1}, v{src+2}')
        for i in range(3, 15, 2): k(f'v_max3_f32 v{dst}, v{dst}, v{src+i}, v{src+i+1}')
        k(f'v_max_f32 v{dst}, v{dst}, v{src+15}')
    def xhalf_max(r, t):
        k(f'v_mov_b32 v{t}, v{r}\ns_nop 1\nv_permlane32_swap_b32 v{t}, v{r}\ns_nop 1\nv_max_f32 v{r}, v{r}, v{t}')
    stamp(k, 1)
    k('s_barrier')
    for x in rdK(0) + rdK(1) + rdV(0): k(x)
    k('s_waitcnt vmcnt(0) lgkmcnt(4)')
    stamp(k, 2)
    for sl in range(2):
        k(f'v_mfma_f32_32x32x16_bf16 {v(S+sl*16,16)}, {v(KB,4)}, {v(Q+sl*8,4)}, 0')
        k(f'v_mfma_f32_32x32x16_bf16 {v(S+sl*16,16)}, {v(KB+4,4)}, {v(Q+sl*8+4,4)}, {v(S+sl*16,16)}')
    k('s_nop 9')
    for sl in range(2):
        rowmax(S + sl * 16, T); xhalf_max(T, T + 1)
        for i in range(16): k(f'v_sub_f32 v{NM+sl*16+i}, 0, v{T}')
        if sl == 0:
            for i in range(16): k(f'v_sub_f32 v{S+i}, v{S+i}, v{T}')
    def qk(kb, sl): return [f'v_mfma_f32_32x32x16_bf16 {v(S+sl*16,16)}, {v(KB+kb*8,4)}, {v(Q+sl*8,4)}, {v(NM+sl*16,16)}',
                            f'v_mfma_f32_32x32x16_bf16 {v(S+sl*16,16)}, {v(KB+kb*8+4,4)}, {v(Q+sl*8+4,4)}, {v(S+sl*16,16)}']
    def pv(vb, sl): return [f'v_mfma_f32_32x32x16_bf16 {v(O+sl*16,16)}, {v(VB+vb*8+s_*4,4)}, {v(PP+sl*8+s_*4,4)}, {v(O+sl*16,16)}' for s_ in range(2)]
    def sm(sl): return [f'v_mfma_f32_16x16x32_bf16 {v(LL+sl*4,4)}, {v(SEL,4)}, {v(PP+sl*8+s_*4,4)}, {v(LL+sl*4,4)}' for s_ in range(2)]
    def unit(sl, mq, mp, ms, extra):
        ex = [f'v_exp_f32 v{S+sl*16+i}, v{S+sl*16+i}' for i in range(16)]
        cv = [f'v_cvt_pk_bf16_f32 v{PP+sl*8+i}, v{S+sl*16+2*i}, v{S+sl*16+2*i+1}' for i in range(8)]
        seq = [mq[0:1], ex[0:3], mp[0:1], ex[3:6], cv[0:1], mq[1:2], extra[0:1], ex[6:9], cv[1:3], mp[1:2], extra[1:2], ex[9:12], cv[3:4], ms[0:1], extra[2:3],
               ex[12:14], cv[4:6], ms[1:2], extra[3:4], ex[14:16], cv[6:7], cv[7:8]]
        for g in seq:
            for x in g: k(x)
    stamp(k, 3)
    L = k.label('loop')
    k(f's_mov_b32 s30, 8\ns_nop 0\n{L}:')
    for t in range(8):
        b = t & 1
        unit(0, qk(b, 1), pv(b ^ 1, 1), sm(1), [])
        k('s_waitcnt lgkmcnt(0)')
        if t == 6: k('s_barrier')
        unit(1, qk(b ^ 1, 0), pv(b, 0), sm(0), rdK(t + 2) + rdV(t + 1))
    k(f'v_mov_b32 v{VC}, v{VN}\nv_add_u32 v{VN}, 0x8000, v{VN}\nv_and_b32 v{VN}, 0x1ffff, v{VN}')
    k(f's_sub_u32 s30, s30, 1\ns_cmp_lg_u32 s30, 0\ns_cbranch_scc1 {L}')
    for x in pv(1, 1) + sm(1): k(x)
    stamp(k, 4)
    k('s_lshl_b32 s21, s22, 16\ns_lshl_b32 s23, s17, 11\ns_add_u32 s21, s21, s23\ns_mov_b32 s31, 0')
    FIN, SLOW, CHK = k.label('fin'), k.label('slow'), k.label('chk')
    k(CHK + ':')
    k(f'v_cmp_nge_f32 vcc, {f2u(2.0**64)}, v{LL}\ns_cbranch_vccnz {SLOW}')
    k(FIN + ':')
    k(f'v_rcp_f32 v{T}, v{LL}\ns_nop 0')
    for i in range(16): k(f'v_mul_f32 v{O+i}, v{O+i}, v{T}')
    for i in range(8): k(f'v_cvt_pk_bf16_f32 v{S+16+i}, v{O+2*i}, v{O+2*i+1}')
    for s_ in range(2): k(f'buffer_store_dwordx4 {v(S+16+4*s_,4)}, v{VA}, s[12:15], s21 offen offset:{s_*1024}')
    DONE = k.label('done')
    k(f's_cmp_lg_u32 s31, 0\ns_cbranch_scc1 {DONE}\ns_mov_b32 s31, 1\ns_add_u32 s21, s21, 0x10000')
    for i in range(16): k(f'v_mov_b32 v{O+i}, v{O+16+i}')
    for i in range(8): k(f'v_mov_b32 v{Q+i}, v{Q+8+i}')
    k(f'v_mov_b32 v{LL}, v{LL+4}\ns_branch {CHK}')
    k(DONE + ':')
    stamp_end(k)
    k('s_endpgm')
    k(SLOW + ':')
    k(f's_waitcnt vmcnt(0) lgkmcnt(0)\nv_mov_b32 v{T+2}, 0xff800000\ns_mov_b32 s28, s27\ns_mov_b32 s30, 64')
    L1 = k.label('s1')
    k(L1 + ':')
    for x in ldK(0): k(x)
    k('s_waitcnt vmcnt(0)')
    k(f'v_mfma_f32_32x32x16_bf16 {v(S,16)}, {v(KB,4)}, {v(Q,4)}, 0\nv_mfma_f32_32x32x16_bf16 {v(S,16)}, {v(KB+4,4)}, {v(Q+4,4)}, {v(S,16)}\ns_nop 15')
    rowmax(S, T)
    k(f'v_max_f32 v{T+2}, v{T+2}, v{T}')
    k(f's_sub_u32 s30, s30, 1\ns_cmp_lg_u32 s30, 0\ns_cbranch_scc1 {L1}')
    xhalf_max(T + 2, T + 1)
    for i in range(16): k(f'v_sub_f32 v{NM+i}, 0, v{T+2}\nv_mov_b32 v{O+i}, 0')
    for i in range(4): k(f'v_mov_b32 v{LL+i}, 0')
    k(f's_mov_b32 s28, s27\ns_add_u32 s29, s27, {4*MB}\ns_mov_b32 s30, 64')
    L2 = k.label('s2')
    k(L2 + ':')
    for x in ldK(0) + ldV(0): k(x)
    k('s_waitcnt vmcnt(0)')
    for x in qk(0, 0): k(x)
    k('s_nop 15')
    for i in range(16): k(f'v_exp_f32 v{S+i}, v{S+i}')
    k('s_nop 0')
    for i in range(8): k(f'v_cvt_pk_bf16_f32 v{PP+i}, v{S+2*i}, v{S+2*i+1}')
    k('s_nop 1')
    for x in pv(0, 0) + sm(0): k(x)
    k('s_nop 15')
    k(f's_sub_u32 s30, s30, 1\ns_cmp_lg_u32 s30, 0\ns_cbranch_scc1 {L2}')
    k(f's_branch {FIN}')
    k(HELP + ':')
    k(f's_load_dwordx2 s[6:7], s[0:1], {ARG_WO}\ns_load_dwordx4 s[36:39], s[0:1], {ARG_WG}\ns_load_dwordx2 s[40:41], s[0:1], {ARG_WD}')
    k('s_sub_u32 s16, s16, 4')
    k('s_lshr_b32 s44, s16, 1\ns_lshl_b32 s44, s44, 22\ns_add_u32 s44, s44, s27\ns_and_b32 s45, s16, 1\ns_lshl_b32 s45, s45, 10\ns_add_u32 s44, s44, s45\ns_lshl_b32 s45, s16, 10')
    k('s_lshl_b32 s17, s2, 2\ns_add_u32 s17, s17, s16\ns_lshl_b32 s18, s17, 11')
    k('s_waitcnt lgkmcnt(0)')
    srd_off(k, 48, 4, WS_Q, 12 * MB)
    def dma(ph):
        for t in range(8): k(f's_add_u32 m0, s45, {(ph&3)*32768 + t*4096}\ns_nop 0\nbuffer_load_dwordx4 v{VA}, s[48:51], s44 offen lds\ns_add_u32 s44, s44, 2048')
    dma(0)
    srd(k, 8, 6, 2*MB); srd_off(k, 12, 4, WS_WBAR, 2048)
    k('s_waitcnt vmcnt(0)\ns_barrier')
    for ph in range(1, 4): dma(ph)
    for g in range(2): k(f'buffer_load_dwordx4 v[{16+4*g}:{19+4*g}], v{VA}, s[8:11], s18 offen offset:{g*1024}')
    srd(k, 20, 36, 7168*1024); srd(k, 24, 38, 7168*1024); srd(k, 28, 40, 7168*1024)
    k(f'v_mul_u32_u24 v1, 4682, v{VL}\nv_lshrrev_b32 v1, 16, v1\nv_mul_u32_u24 v2, 14, v1\nv_sub_u32 v2, v{VL}, v2\nv_mul_u32_u24 v1, 7168, v1\nv_lshl_add_u32 v1, v2, 7, v1')
    k(f'v_cmp_gt_u32 vcc, 56, v{VL}\nv_mov_b32 v2, 0x7f000000\nv_lshlrev_b32 v3, 7, v{VL}\nv_cndmask_b32 v1, v2, v1, vcc\nv_cndmask_b32 v3, v2, v3, vcc')
    k('s_lshr_b32 s32, s2, 3\ns_lshl_b32 s32, s32, 2\ns_add_u32 s32, s32, s16')
    k(f's_and_b32 s33, s2, 1\ns_lshl_b32 s33, s33, 7\ns_add_u32 s33, s33, s32\ns_mul_i32 s33, s33, {4*7168}\ns_bfe_u32 s34, s2, 0x20001\ns_mul_i32 s34, s34, 1792\ns_add_u32 s33, s33, s34')
    k(f's_mul_i32 s34, s17, {56*128}')
    k(f'v_lshrrev_b32 v4, 3, v{VL}\nv_lshlrev_b32 v4, 11, v4\nv_and_b32 v5, 7, v{VL}\nv_lshl_add_u32 v4, v5, 7, v4')
    k('s_lshl_b32 s35, s32, 14\ns_bfe_u32 s42, s2, 0x10002\ns_lshl_b32 s42, s42, 10\ns_add_u32 s35, s35, s42')
    k('v_mov_b32 v6, 0\nv_mov_b32 v7, 0x3f803f80')
    k('s_waitcnt vmcnt(18)\ns_barrier')
    k('s_waitcnt vmcnt(0)')
    k('buffer_load_dword v8, v3, s[28:31], s34 offen')
    for i in range(8): k(f'v_dot2c_f32_bf16 v6, v{16+i}, v7')
    k('s_nop 2')
    dpp_reduce(k, [6])
    k(f'v_mul_f32 v6, {f2u(1/1024)}, v6\nv_cvt_pk_bf16_f32 v6, v6, v6\nv_mov_b32 v11, 0\ns_lshl_b32 s17, s17, 1')
    k('s_mov_b32 exec_lo, 0\ns_mov_b32 exec_hi, 0x80000000\nbuffer_store_short v6, v11, s[12:15], s17 offen\ns_mov_b64 exec, -1')
    srd_off(k, 12, 4, WS_XC, 4 * MB)
    k('s_lshl_b32 s43, s18, 1\nv_mov_b32 v24, -1\nv_mov_b32 v25, -1\nv_mov_b32 v26, -1\nv_mov_b32 v27, -1')
    for i in range(4): k(f'buffer_store_dwordx4 v[24:27], v{VA}, s[12:15], s43 offen offset:{i*1024}')
    srd_off(k, 12, 4, WS_FL, 262144)
    k(f's_lshr_b32 s43, s18, 3\nv_lshlrev_b32 v28, 2, v{VL}\nbuffer_store_dword v11, v28, s[12:15], s43 offen')
    k('s_barrier')
    dma(4)
    k('buffer_load_dword v9, v1, s[20:23], s33 offen')
    k('s_barrier')
    dma(5)
    k('s_waitcnt vmcnt(9)\ns_barrier')
    dma(6)
    k('buffer_load_dword v10, v1, s[24:27], s33 offen')
    k('s_waitcnt vmcnt(9)\ns_barrier')
    dma(7)
    k('s_waitcnt vmcnt(9)\ns_barrier')
    k('buffer_load_dword v8, v4, s[8:11], s35 offen')
    k('s_waitcnt vmcnt(1)\ns_barrier')
    return k
```

```python
from asmlib import *
MB = 1 << 20
WS_XN, WS_Q, WS_K, WS_V, WS_O, WS_H, WS_HN, WS_HH = 0, 4*MB, 8*MB, 12*MB, 16*MB, 20*MB, 24*MB, 28*MB
WS_MEANX, WS_WBAR, WS_SS = 44*MB, 44*MB + 16384, 44*MB + 65536
WS_XC = 48*MB; WS_FL = 46*MB
SSN = 32
ARG_X, ARG_WQKV, ARG_WO, ARG_BX, ARG_WG, ARG_WU, ARG_WD, ARG_OUT, ARG_DBG, ARG_WS = [8*i for i in range(10)]
LOG2E = 1.4426950408889634
import struct
def f2u(x): return '0x%08x' % struct.unpack('<I', struct.pack('<f', x))[0]

def guard(k, n):
    L = k.label('go')
    k(f's_cmp_lt_u32 s2, {n}\ns_cbranch_scc1 {L}\ns_endpgm\n{L}:')

def srd_off(k, d, base, off, nbytes):
    k(f's_add_u32 s{d}, s{base}, {off}')
    k(f's_addc_u32 s{d+1}, s{base+1}, 0')
    k(f's_and_b32 s{d+1}, s{d+1}, 0xffff')
    k(f's_mov_b32 s{d+2}, {nbytes}')
    k(f's_mov_b32 s{d+3}, 0x00020000')

def interleave(k, mf, fill, lead=0):
    n = len(mf); m = len(fill)
    for i in range(n):
        k(mf[i])
        for x in fill[i * m // n:(i + 1) * m // n]: k(x)

import os
STAMP = int(os.environ.get('STAMP', '-1'))
def stamp(k, i):
    if STAMP < 0 or i >= 100: return
    k.sgpr = 102
    if i == 0: k('s_memrealtime s[96:97]')
    k(f's_memtime s[{60+2*i}:{61+2*i}]')
    k.nst = max(getattr(k, 'nst', 0), i + 1)
def stamp_end(k):
    if STAMP < 0: return
    stamp(k, k.nst)
    k('s_waitcnt vmcnt(0)')
    stamp(k, k.nst)
    L = k.label('st')
    k(f's_memrealtime s[98:99]\ns_load_dwordx2 s[52:53], s[0:1], {ARG_DBG}\ns_waitcnt lgkmcnt(0)\ns_cmp_lg_u32 s2, {STAMP}\ns_cbranch_scc1 {L}\ns_cmp_lg_u32 s16, 0\ns_cbranch_scc1 {L}')
    srd_off(k, 56, 52, 0, 256)
    k('s_sub_u32 s98, s98, s96\nv_mov_b32 v1, s98\nv_mov_b32 v2, 0\nbuffer_store_dword v1, v2, s[56:59], 0 offen')
    for i in range(1, k.nst):
        k(f's_sub_u32 s98, s{60+2*i}, s60\nv_mov_b32 v1, s98\nbuffer_store_dword v1, v2, s[56:59], 0 offen offset:{4*i}')
    k(L + ':')

def dpp_reduce(k, regs, op='v_add_f32'):
    for m in ['row_shr:1', 'row_shr:2', 'row_shr:4', 'row_shr:8']:
        k('s_nop 1')
        for r in regs: k(f'{op} v{r}, v{r}, v{r} {m} row_mask:0xf bank_mask:0xf bound_ctrl:0')
    for m in ['row_bcast:15 row_mask:0xa', 'row_bcast:31 row_mask:0xc']:
        k('s_nop 1')
        for r in regs: k(f'{op} v{r}, v{r}, v{r} {m} bank_mask:0xf')
def xhalf_add(k, r, t):
    k(f'v_mov_b32 v{t}, v{r}\ns_nop 1\nv_permlane32_swap_b32 v{t}, v{r}\ns_nop 1\nv_add_f32 v{r}, v{r}, v{t}')

def xq_add(k, r, t):
    k(f'v_mov_b32 v{t}, v{r}\ns_nop 1\nv_permlane16_swap_b32 v{t}, v{r}\ns_nop 1\nv_add_f32 v{r}, v{r}, v{t}')
```

```python
from common import *
def ln1_kernel():
    k = K('ln1_kernel', 256, 256, 0, vgpr=64, sgpr=40)
    guard(k, 256)
    k(f's_load_dwordx4 s[4:7], s[0:1], {ARG_X}\ns_load_dwordx2 s[28:29], s[0:1], {ARG_WS}')
    k('v_lshrrev_b32 v2, 6, v0\nv_and_b32 v1, 63, v0\nv_readfirstlane_b32 s16, v2\nv_lshlrev_b32 v3, 4, v1')
    k('s_lshl_b32 s17, s2, 3\ns_lshl_b32 s18, s16, 1\ns_add_u32 s17, s17, s18\ns_lshl_b32 s18, s17, 11')
    for j in range(2):
        k(f'v_add_u32 v4, {256*j}, v0\nv_mul_u32_u24 v5, 5462, v4\nv_lshrrev_b32 v5, 16, v5\nv_mul_u32_u24 v6, 12, v5\nv_sub_u32 v6, v4, v6')
        k(f'v_mul_u32_u24 v5, 6144, v5\nv_lshrrev_b32 v7, 2, v6\nv_lshl_add_u32 v5, v7, 11, v5\nv_and_b32 v6, 3, v6\nv_lshl_add_u32 v{8+j}, v6, 7, v5')
    k('v_cmp_gt_u32 vcc, 128, v0\nv_mov_b32 v4, 0x7f000000\ns_nop 0\nv_cndmask_b32 v9, v4, v9, vcc')
    k(f's_lshr_b32 s19, s2, 3\ns_mul_i32 s19, s19, {32*6144}\ns_bfe_u32 s20, s2, 0x20001\ns_lshl_b32 s20, s20, 9\ns_add_u32 s19, s19, s20')
    k('s_waitcnt lgkmcnt(0)')
    srd(k, 8, 4, 4*MB); srd(k, 12, 6, 6*MB)
    for r in range(2):
        for g in range(2): k(f'buffer_load_dwordx4 v[{16+r*8+g*4}:{19+r*8+g*4}], v3, s[8:11], s18 offen offset:{r*2048+g*1024}')
    k('buffer_load_dword v10, v8, s[12:15], s19 offen\nbuffer_load_dword v11, v9, s[12:15], s19 offen')
    srd_off(k, 20, 28, WS_XN, 4*MB); srd_off(k, 24, 28, WS_MEANX, 8192)
    k('v_lshrrev_b32 v12, 1, v1\nv_lshlrev_b32 v12, 10, v12\nv_and_b32 v13, 1, v1\nv_lshl_add_u32 v12, v13, 9, v12\nv_add_u32 v13, 0x8000, v12')
    k('s_lshr_b32 s30, s17, 5\ns_lshl_b32 s30, s30, 16\ns_and_b32 s31, s17, 31\ns_lshl_b32 s31, s31, 4\ns_add_u32 s30, s30, s31')
    k('s_waitcnt vmcnt(2)')
    for i in range(16): k(f'v_lshlrev_b32 v{32+2*i}, 16, v{16+i}\nv_and_b32 v{33+2*i}, 0xffff0000, v{16+i}')
    for r in range(2):
        k(f'v_add_f32 v{14+r}, v{32+16*r}, v{33+16*r}')
        for i in range(2, 16): k(f'v_add_f32 v{14+r}, v{14+r}, v{32+16*r+i}')
    dpp_reduce(k, [14, 15])
    k(f'v_mul_f32 v14, {f2u(1/1024)}, v14\nv_mul_f32 v15, {f2u(1/1024)}, v15\ns_nop 0\nv_readlane_b32 s32, v14, 63\nv_readlane_b32 s33, v15, 63\ns_nop 1')
    for r in range(2):
        for i in range(16): k(f'v_subrev_f32 v{32+16*r+i}, s{32+r}, v{32+16*r+i}')
    for r in range(2):
        k(f'v_mul_f32 v{14+r}, v{32+16*r}, v{32+16*r}')
        for i in range(1, 16): k(f'v_fmac_f32 v{14+r}, v{32+16*r+i}, v{32+16*r+i}')
    dpp_reduce(k, [14, 15])
    for r in range(2): k(f'v_mov_b32 v{4+r}, {f2u(1e-5)}\nv_fmac_f32 v{4+r}, {f2u(1/1024)}, v{14+r}\nv_rsq_f32 v{4+r}, v{4+r}')
    k('s_nop 1\nv_readlane_b32 s34, v4, 63\nv_readlane_b32 s35, v5, 63\ns_nop 1')
    for r in range(2):
        for i in range(16): k(f'v_mul_f32 v{32+16*r+i}, s{34+r}, v{32+16*r+i}')
        for i in range(8): k(f'v_cvt_pk_bf16_f32 v{16+8*r+i}, v{32+16*r+2*i}, v{33+16*r+2*i}')
        for g in range(2): k(f'buffer_store_dwordx4 v[{16+r*8+g*4}:{19+r*8+g*4}], v{12+g}, s[20:23], s30 offen offset:{16*r}')
    k('v_mov_b32 v4, s32\nv_mov_b32 v5, s33\nv_mov_b32 v6, 0\ns_lshl_b32 s17, s17, 2\ns_mov_b64 exec, 1')
    k('buffer_store_dwordx2 v[4:5], v6, s[24:27], s17 offen')
    return k
```

```python
from common import *
from t1 import T1, t1_mainloop, t1_loader, t1_worker, lane_setup, tr_lane_terms
def qkv_kernel():
    c = T1(); c.SUB, c.NST, c.NSTAGES, c.MT, c.NT, c.G = 4, 4, 16, 2, 3, 10
    c.SB = 40960; XB = 16384; c.sCnt = 28
    k = K('qkv_kernel', 256, 768, c.SB * c.NST, vgpr=168, sgpr=56)
    guard(k, 256)
    stamp(k, 0)
    k(f's_load_dwordx4 s[4:7], s[0:1], {ARG_X}\ns_load_dwordx2 s[36:37], s[0:1], {ARG_WS}')
    FR, VL, XA, WA, T = 96, 136, 137, 145, 150
    SW = 16
    lane_setup(k, VL, SW)
    k('s_and_b32 s17, s2, 1\ns_lshl_b32 s17, s17, 3\ns_bfe_u32 s18, s2, 0x30003\ns_add_u32 s17, s17, s18')
    k('s_bfe_u32 s18, s2, 0x20001\ns_lshl_b32 s18, s18, 2\ns_lshr_b32 s19, s2, 6\ns_add_u32 s18, s18, s19')
    MAIN, STAT = k.label('main'), k.label('stat')
    k(f's_cmp_lt_u32 s{SW}, 4\ns_cbranch_scc1 {MAIN}\ns_cmp_ge_u32 s{SW}, 8\ns_cbranch_scc1 {STAT}')
    k(f's_sub_u32 s{SW}, s{SW}, 4')
    vXd, vWd = 8, 12
    k(f's_lshl_b32 s22, s17, 2\ns_add_u32 s22, s22, s{SW}\ns_lshl_b32 s22, s22, 16')
    k(f'v_lshrrev_b32 v1, 3, v{VL}\nv_and_b32 v2, 7, v{VL}\nv_lshrrev_b32 v3, 4, v{VL}\nv_xor_b32 v3, v2, v3\nv_lshlrev_b32 v4, 11, v1\nv_lshl_add_u32 v4, v3, 4, v4\nv_add_u32 v{vXd}, s22, v4')
    k(f'v_xor_b32 v4, 64, v{vXd}\nv_add_u32 v{vXd+1}, 0x4000, v4\nv_add_u32 v{vXd+2}, 0x8000, v{vXd}\nv_add_u32 v{vXd+3}, 0xc000, v4')
    k(f'v_bfe_u32 v3, v{VL}, 4, 1\nv_lshlrev_b32 v3, 2, v3\nv_xor_b32 v2, v2, v3\nv_mul_u32_u24 v1, 6144, v1\nv_lshl_add_u32 v1, v2, 4, v1')
    k(f's_mul_i32 s22, s{SW}, {16*6144}\ns_lshl_b32 s23, s18, 7\ns_add_u32 s22, s22, s23\nv_add_u32 v1, s22, v1')
    for kg in range(2):
        for p in range(3): k(f'v_add_u32 v{vWd+kg*3+p}, {kg*8*6144 + p*2048}, v1')
    k(f's_lshl_b32 s24, s{SW}, 12\ns_mul_i32 s25, s{SW}, 6144\ns_add_u32 s25, s25, {XB}\ns_mov_b32 s26, 0\ns_mov_b32 s27, 0')
    k('s_waitcnt lgkmcnt(0)')
    srd(k, 8, 4, 4*MB); srd(k, 12, 6, 6*MB)
    def dma(slot):
        r = [f's_add_u32 m0, s24, {slot*c.SB + j*1024}\ns_nop 0\nbuffer_load_dwordx4 v{vXd+j}, s[8:11], s26 offen lds' for j in range(4)]
        r += [f's_add_u32 m0, s25, {slot*c.SB + j*1024}\ns_nop 0\nbuffer_load_dwordx4 v{vWd+j}, s[12:15], s27 offen lds' for j in range(6)]
        return r
    t1_loader(k, c, dma, f's_add_u32 s26, s26, 128\ns_add_u32 s27, s27, {64*6144}')
    k('s_endpgm')
    def xaddr_setup(srow):
        k(f'v_and_b32 v{T}, 31, v{VL}\nv_bfe_u32 v{T+1}, v{VL}, 1, 3\nv_lshrrev_b32 v{T+2}, 5, v{VL}\nv_xor_b32 v{T+1}, v{T+1}, v{T+2}\nv_add_u32 v{T}, s{srow}, v{T}\nv_lshlrev_b32 v{T}, 7, v{T}\nv_lshl_add_u32 v{XA}, v{T+1}, 4, v{T}')
        for kt in range(1, 4): k(f'v_xor_b32 v{XA+kt}, {kt*32}, v{XA}')
        for kt in range(4): k(f'v_add_u32 v{XA+4+kt}, {2*c.SB}, v{XA+kt}')
    c.xaddr = lambda slot, mt, kt: f'v{XA + (slot>>1)*4 + kt} offset:{(slot&1)*c.SB + mt*4096}'
    k(STAT + ':')
    k(f's_sub_u32 s{SW}, s{SW}, 8\ns_lshl_b32 s22, s{SW}, 5')
    xaddr_setup(22)
    CA, S1, S2, CS, ONE, U = 84, 100, 102, 104, 110, 112
    k(f'v_lshrrev_b32 v1, 4, v{VL}\nv_mul_u32_u24 v1, 3072, v1\nv_bfe_u32 v2, v{VL}, 2, 2\nv_lshl_add_u32 v1, v2, 7, v1\nv_and_b32 v3, 1, v{VL}\nv_lshl_add_u32 v1, v3, 3, v1')
    k(f'v_lshrrev_b32 v2, 1, v2\nv_lshlrev_b32 v2, 2, v2\nv_bfe_u32 v3, v{VL}, 1, 1\nv_xor_b32 v2, v2, v3')
    for j in range(3):
        k(f's_mul_i32 s22, s{SW}, 3\ns_add_u32 s22, s22, {j}\ns_and_b32 s23, s22, 3\ns_lshl_b32 s23, s23, 1\ns_lshr_b32 s22, s22, 2\ns_lshl_b32 s22, s22, 10\ns_add_u32 s22, s22, {XB}')
        k(f'v_xor_b32 v3, s23, v2\nv_lshl_add_u32 v3, v3, 4, v1\nv_add_u32 v3, s22, v3')
        for sl in range(4): k(f'v_add_u32 v{CA+j*4+sl}, {sl*c.SB}, v3')
    for i in range(10): k(f'v_mov_b32 v{S1+i}, 0')
    k(f'v_mov_b32 v{ONE}, 0x3f803f80\ns_waitcnt lgkmcnt(0)')
    QX = os.environ.get('QX', 'd')
    def work(slot, st):
        B = 4 + st * 40
        rd = [f'ds_read_b128 {v(B+4*kt, 4)}, ' + c.xaddr(slot, 0, kt) for kt in range(4)]
        rd += [f'ds_read_b64_tr_b16 {v(B + 16 + j*8 + kb*4 + hf*2, 2)}, v{CA+j*4+slot} offset:{kb*12288 + hf*512}' for j in range(3) for kb in range(2) for hf in range(2)]
        cp = []
        for i in range(16):
            if 'v' in QX:
                u = U + 2 * (i & 3)
                cp += [f'v_lshlrev_b32 v{u}, 16, v{B+i}', f'v_and_b32 v{u+1}, 0xffff0000, v{B+i}', f'v_pk_add_f32 {v(S1,2)}, {v(S1,2)}, {v(u,2)}', f'v_pk_fma_f32 {v(S2,2)}, {v(u,2)}, {v(u,2)}, {v(S2,2)}']
            elif 'd' in QX: cp += [f'v_dot2c_f32_bf16 v{S1+(i&1)}, v{B+i}, v{ONE}', f'v_dot2c_f32_bf16 v{S2+(i&1)}, v{B+i}, v{B+i}']
        for i in range(8):
            for j in range(3):
                if 'V' in QX:
                    u = U + 2 * j
                    cp += [f'v_lshlrev_b32 v{u}, 16, v{B+16+j*8+i}', f'v_and_b32 v{u+1}, 0xffff0000, v{B+16+j*8+i}', f'v_pk_add_f32 {v(CS+2*j,2)}, {v(CS+2*j,2)}, {v(u,2)}']
                elif 'n' not in QX: cp.append(f'v_dot2c_f32_bf16 v{CS+j*2+(i&1)}, v{B+16+j*8+i}, v{ONE}')
        return rd, cp
    if 'p' in QX: k('s_setprio 3')
    t1_worker(k, c, work)
    k('s_nop 2')
    for r in (S1, S2, CS, CS+2, CS+4): k(f'v_add_f32 v{r}, v{r}, v{r+1}')
    for r in (S1, S2, CS, CS+2, CS+4): xhalf_add(k, r, r + 1)
    for r in (CS, CS+2, CS+4): xq_add(k, r, r + 1)
    k(f'v_mul_f32 v{S1}, {f2u(1/1024)}, v{S1}\nv_mul_f32 v{S2}, {f2u(1/1024)}, v{S2}\nv_fma_f32 v{S2}, -v{S1}, v{S1}, v{S2}\nv_max_f32 v{S2}, 0, v{S2}\nv_add_f32 v{S2}, {f2u(1e-5)}, v{S2}\nv_rsq_f32 v{S2}, v{S2}')
    k(f'v_and_b32 v1, 31, v{VL}\nv_lshlrev_b32 v1, 2, v1\ns_lshl_b32 s22, s{SW}, 7\nv_add_u32 v2, s22, v1\nv_mul_f32 v{S2+1}, v{S1}, v{S2}\nv_sub_f32 v{S2+1}, 0, v{S2+1}')
    k(f'ds_write2_b32 v2, v{S2}, v{S2+1} offset0:0 offset1:128')
    k(f'v_and_b32 v3, 15, v{VL}\nv_lshlrev_b32 v3, 2, v3\ns_mul_i32 s23, s{SW}, 192\nv_add_u32 v3, s23, v3')
    for j in range(3): k(f'ds_write_b32 v3, v{CS+2*j} offset:{1024 + 64*j}')
    k('s_waitcnt lgkmcnt(0)\ns_barrier')
    E = k.label('e')
    k(f's_cmp_lg_u32 s18, 0\ns_cbranch_scc1 {E}')
    srd_off(k, 8, 36, WS_MEANX, 8192)
    k(f's_lshl_b32 s23, s17, 9\ns_add_u32 s22, s22, s23\nbuffer_store_dword v{S1}, v1, s[8:11], s22 offen')
    k(E + ':\ns_endpgm')
    k(MAIN + ':')
    k('s_setprio 2\ns_and_b32 s20, s16, 1\ns_lshr_b32 s21, s16, 1')
    k(f's_lshr_b32 s22, s2, 3\ns_lshl_b32 s22, s22, 2\ns_add_u32 s22, s22, s{SW}\ns_and_b32 s23, s2, 1\ns_bfe_u32 s24, s2, 0x20001')
    k(f's_lshl_b32 s25, s23, 2\ns_add_u32 s25, s25, s24\ns_lshl_b32 s25, s25, 7\ns_add_u32 s25, s25, s22\ns_lshl_b32 s25, s25, 12')
    k(f's_lshl_b32 s26, s23, 7\ns_add_u32 s26, s26, s22\ns_mul_i32 s26, s26, 6144\ns_lshl_b32 s24, s24, 9\ns_add_u32 s26, s26, s24')
    k(f'v_lshrrev_b32 v{T+3}, 2, v{VL}\nv_lshlrev_b32 v{T+3}, 11, v{T+3}\nv_and_b32 v{T+2}, 3, v{VL}\nv_lshl_add_u32 v{T+3}, v{T+2}, 7, v{T+3}')
    k('s_waitcnt lgkmcnt(0)')
    srd(k, 8, 4, 4*MB); srd(k, 12, 6, 6*MB)
    def pf(gs):
        for g in gs:
            k(f's_add_u32 s27, s26, {g*256*6144}\ns_mov_b64 exec, 0xfff\nbuffer_load_dword v{T+4}, v{T+3}, s[12:15], s27 offen\ns_mov_b64 exec, 0xff\nbuffer_load_dword v{T+4}, v{T+3}, s[8:11], s25 offen offset:{g*512}')
        k('s_mov_b64 exec, -1')
    if 'e' in QX: pf([1]); c.atP0 = lambda: pf([2, 3])
    elif 'E' in QX: pf([1, 2, 3])
    else: c.atP0 = lambda: pf([1, 2, 3])
    T2 = T + 5
    k('s_lshl_b32 s22, s21, 6')
    xaddr_setup(22)
    c.vW = [WA + i for i in range(4)]
    tr_lane_terms(k, VL, T2, T2+1, T2+2)
    k(f'v_and_b32 v{T2+3}, 1, v{T2}\nv_lshlrev_b32 v{T2+3}, 1, v{T2+3}\ns_lshl_b32 s22, s20, 2\nv_add_u32 v{T2+3}, s22, v{T2+3}')
    k(f'v_lshrrev_b32 v{T2+4}, 1, v{T2+2}\nv_add_u32 v{T2+3}, v{T2+3}, v{T2+4}\nv_lshrrev_b32 v{T2+4}, 1, v{T2+1}\nv_lshlrev_b32 v{T2+4}, 2, v{T2+4}\nv_xor_b32 v{T2+3}, v{T2+3}, v{T2+4}')
    k(f'v_lshlrev_b32 v{T2+3}, 4, v{T2+3}\nv_and_b32 v{T2+4}, 1, v{T2+2}\nv_lshl_add_u32 v{T2+3}, v{T2+4}, 3, v{T2+3}\nv_lshl_add_u32 v{T2+3}, v{T2+1}, 7, v{T2+3}')
    k(f'v_lshrrev_b32 v{T2+4}, 1, v{T2}\nv_mul_u32_u24 v{T2+4}, 3072, v{T2+4}\nv_add_u32 v{T2+3}, v{T2+3}, v{T2+4}')
    for sl in range(4): k(f'v_add_u32 v{c.vW[sl]}, {sl*c.SB + XB}, v{T2+3}')
    c.frag = lambda i, n: v(FR + i, n)
    c.woff = lambda nt, j, hf: j * 6144 + nt * 1024 + hf * 512
    c.swap = lambda nt: nt == 2
    c.RS, c.DS, c.BP, c.GA = 4, 0, 1, 0
    c.loader = True; c.dma = None
    t1_mainloop(k, c)
    srd_off(k, 8, 36, WS_Q, 12*MB)
    k('s_lshl_b32 s22, s18, 1\ns_add_u32 s22, s22, s20\ns_lshl_b32 s22, s22, 6\ns_lshl_b32 s23, s17, 2\ns_add_u32 s22, s22, s23\ns_lshl_b32 s23, s21, 1\ns_add_u32 s22, s22, s23\ns_lshl_b32 s22, s22, 11')
    AB, CSL, VO, A1, A2, A3, A4 = 128, 149, 137, 138, 139, 140, 141
    k(f'v_lshlrev_b32 v{VO}, 4, v{VL}\nv_and_b32 v{A1}, 31, v{VL}\nv_lshrrev_b32 v{A2}, 5, v{VL}\ns_lshl_b32 s23, s21, 8\ns_lshl_b32 s24, s20, 7\ns_add_u32 s24, s24, 1024')
    k(f'v_and_b32 v{A4}, 0x13, v{VL}\nv_bfe_u32 v{T}, v{VL}, 2, 1\nv_lshl_add_u32 v{A4}, v{T}, 3, v{A4}\nv_bfe_u32 v{T}, v{VL}, 3, 1\nv_lshl_add_u32 v{A4}, v{T}, 2, v{A4}\nv_lshl_add_u32 v{A4}, v{A4}, 2, s24')
    k(f'v_lshl_add_u32 v{A1}, v{A1}, 2, s23\nv_lshl_add_u32 v{A3}, v{A2}, 4, s23\nv_lshl_add_u32 v{A2}, v{A2}, 5, s24')
    k('s_barrier')
    for mt in range(2): k(f'ds_read_b32 v{AB+4*mt}, v{A1} offset:{mt*128}\nds_read_b32 v{AB+4*mt+2}, v{A1} offset:{512+mt*128}')
    for nt in range(2):
        for q in range(4): k(f'ds_read_b128 {v(FR+nt*16+4*q, 4)}, v{A2} offset:{nt*256 + (q>>1)*64 + (q&1)*16}')
    k(f'ds_read_b32 v{T}, v{A4} offset:512')
    k(f's_mov_b32 s29, {f2u(32 ** -0.5 * LOG2E)}\ns_waitcnt lgkmcnt(0)')
    def fin(b, mt):
        for i in range(8): k(f'v_cvt_pk_bf16_f32 v{b+i}, v{b+2*i}, v{b+2*i+1}')
        for s_ in range(2): k(f'buffer_store_dwordx4 {v(b+4*s_, 4)}, v{VO}, s[8:11], s22 offen offset:{mt*2048 + s_*1024}')
    for nt in (1, 0):
        if nt == 1: k(f's_add_u32 s22, s22, {4*MB}')
        else:
            k(f's_sub_u32 s22, s22, {4*MB}')
            for i in range(0, 8, 2): k(f'v_mul_f32 v{AB+i}, s29, v{AB+i}')
        for mt in range(2):
            b = (nt * 2 + mt) * 16
            for i in range(0, 16, 2):
                k(f'v_pk_mul_f32 {v(b+i,2)}, {v(b+i,2)}, {v(AB+4*mt,2)} op_sel_hi:[1,0]')
                k(f'v_pk_fma_f32 {v(b+i,2)}, {v(FR+nt*16+i,2)}, {v(AB+4*mt+2,2)}, {v(b+i,2)} op_sel_hi:[1,0,1]')
            fin(b, mt)
    k(f's_add_u32 s22, s22, {8*MB}')
    for mt in range(2):
        for q in range(4): k(f'ds_read_b128 {v(FR+4*q, 4)}, v{A3} offset:{mt*128 + q*32}\nds_read_b128 {v(FR+16+4*q, 4)}, v{A3} offset:{512 + mt*128 + q*32}')
        k('s_waitcnt lgkmcnt(0)')
        b = (4 + mt) * 16
        for i in range(0, 16, 2):
            k(f'v_pk_mul_f32 {v(b+i,2)}, {v(b+i,2)}, {v(FR+i,2)}')
            k(f'v_pk_fma_f32 {v(b+i,2)}, {v(FR+16+i,2)}, {v(T,2)}, {v(b+i,2)} op_sel_hi:[1,0,1]')
        fin(b, mt)
    stamp_end(k)
    return k
```

```python
from common import *
class T1:
    pass
def t1_mainloop(k, c):
    KS = getattr(c, 'KS', 1)
    FS = (c.MT + c.NT) * 4 * KS
    fr = getattr(c, 'frag', a_); acc = getattr(c, 'acc', v)
    def xf(s_, ks, mt): return s_ * FS + ks * (c.MT + c.NT) * 4 + mt * 4
    def wf(s_, ks, nt): return s_ * FS + ks * (c.MT + c.NT) * 4 + c.MT * 4 + nt * 4
    c.xf = xf
    def reads(slot, j, s_):
        r = []
        for ks in range(KS):
            kt = j * KS + ks
            xs = [(xf(s_, ks, mt), f'ds_read_b128 {fr(xf(s_, ks, mt), 4)}, ' + (c.xaddr(slot, mt, kt) if hasattr(c, 'xaddr') else f'v{c.vX[slot]} offset:{c.xoff(mt, kt)}')) for mt in range(c.MT)]
            ws = [(wf(s_, ks, nt), f'ds_read_b64_tr_b16 {fr(wf(s_, ks, nt) + 2 * hf, 2)}, v{c.vW[slot]} offset:{c.woff(nt, kt, hf)}') for nt in range(c.NT) for hf in range(2)]
            if 'x' in os.environ.get('DX', '') and k.name.startswith('down'): xs = []
            if 'w' in os.environ.get('DX', '') and k.name.startswith('down'): ws = []
            r += xs[:1] + ws[:2] + xs[1:] + ws[2:]
            if hasattr(c, 'xreads'): r += c.xreads(s_, ks)
        return r
    def mfmas(s_):
        r = []
        for ks in range(KS):
            for nt in range(c.NT):
                for mt in range(c.MT):
                    d = acc((nt * c.MT + mt) * 16, 16)
                    A, B = fr(wf(s_, ks, nt), 4), fr(xf(s_, ks, mt), 4)
                    if c.swap(nt): A, B = B, A
                    r.append(((wf(s_, ks, nt), xf(s_, ks, mt)), f'v_mfma_f32_32x32x16_bf16 {d}, {A}, {B}, {d}'))
        return r
    q = []
    def need(tags):
        last = max([i for i, t in enumerate(q) if t in tags], default=-1)
        if last >= 0:
            n = len(q) - 1 - last
            n = min(n, 14)
            k(f's_waitcnt lgkmcnt({n})')
            del q[:len(q) - n]
    def run(mf, plan):
        for i, (tags, ins) in enumerate(mf):
            need(tags)
            k(ins)
            for t, x in plan[i]:
                if t == 'bar':
                    k(x); del q[:]
                elif isinstance(t, tuple):
                    need(t); k(x)
                else:
                    k(x)
                    if t is not None: q.append(t)
    def spread(plan, items, lo, hi):
        n = hi - lo
        for i in range(n): plan[lo + i] += items[i * len(items) // n:(i + 1) * len(items) // n]
    tailx = getattr(c, 'tailx', [])
    def stage(t, slot, dmaB, dmaA, wait):
        cnt = c.NSTAGES - c.NST
        add = len(tailx) if (t is not None and t > cnt) else 0
        d = [(None, x) for x in c.dma((slot - 1) % c.NST)[c.GA:]] if dmaB else []
        if d: d[-1] = (None, d[-1][1] + '\n' + c.adv)
        dA = [(None, x) for x in c.dma(slot)[:c.GA]] if dmaA else []
        if t == cnt + 1: d = [(None, x) for x in tailx]
        nd = max(1, c.SUB - 1)
        for j in range(c.SUB):
            s_ = j & 1
            mf = mfmas(s_); n = len(mf)
            plan = [[] for _ in mf]
            if j < c.SUB - 1:
                spread(plan, reads(slot, j + 1, s_ ^ 1), 0, c.RS)
                spread(plan, d[j * len(d) // nd:(j + 1) * len(d) // nd], c.DS, n)
            elif wait is not None:
                plan[c.BP].append(('bar', 's_waitcnt lgkmcnt(0)\ns_barrier' if LD else f's_waitcnt vmcnt({wait * c.G + add}) lgkmcnt(0)\ns_barrier'))
                spread(plan, reads((slot + 1) % c.NST, 0, s_ ^ 1), c.BP, min(n, c.BP + c.RS))
                spread(plan, dA, c.BP, n)
            if hasattr(c, 'extra'): spread(plan, c.extra(t, j, s_), c.XS, n)
            run(mf, plan)
    assert c.SUB % 2 == 0
    stamp(k, 1)
    LD = getattr(c, 'loader', False)
    if LD:
        real_dma = c.dma; c.dma = lambda slot: []; c.adv = ''; c.GA = 0
    for x in c.dma(0): k(x)
    k(c.adv)
    if hasattr(c, 'late'): c.late()
    pd = []
    for t in range(1, c.NST - 1):
        pd += c.dma(t) if not LD else ['']; pd[-1] += '\n' + c.adv
    pd += c.dma(c.NST - 1)[:c.GA]
    interleave(k, pd, [f'v_mov_b32 v{i}, 0' for i in range(c.MT * c.NT * 16)])
    k('s_barrier' if LD else f's_waitcnt vmcnt({(c.NST - 2) * c.G + c.GA})\ns_barrier')
    stamp(k, 2)
    for t_, x in reads(0, 0, 0): k(x); q.append(t_)
    if hasattr(c, 'atP0'): c.atP0()
    cnt = c.NSTAGES - c.NST
    iters = 0 if getattr(c, 'unroll', False) else cnt // c.NST
    if iters:
        L = k.label('loop')
        k(f's_mov_b32 s{c.sCnt}, {iters}')
        k(L + ':')
        q0 = list(q)
        for sl in range(c.NST): stage(None, sl, True, True, c.NST - 2)
        assert q == q0, (q, q0)
        k(f's_sub_u32 s{c.sCnt}, s{c.sCnt}, 1\ns_cmp_lg_u32 s{c.sCnt}, 0\ns_cbranch_scc1 {L}')
    stamp(k, 3)
    for t in range(iters * c.NST, c.NSTAGES):
        stage(t, t % c.NST, t <= cnt, t < cnt, None if t == c.NSTAGES - 1 else min(c.NST - 2, c.NSTAGES - 2 - t))
    k('s_waitcnt vmcnt(0)\ns_nop 14')
    stamp(k, 4)

def t1_loader(k, c, dma, adv, work=None):
    for t in range(c.NST):
        for x in dma(t): k(x)
        k(adv)
        if t == 0 and hasattr(c, 'llate'): c.llate()
    k(f's_waitcnt vmcnt({(c.NST - 1) * c.G})\ns_barrier')
    def step(slot, d, wait):
        rd, cp = work(slot) if work else ([], [])
        for x in rd: k(x)
        if d:
            dd = dma((slot - 1) % c.NST); dd[-1] += '\n' + adv
            h = len(dd) // 3
            for x in dd[:h]: k(x)
            if rd: k('s_waitcnt lgkmcnt(0)')
            interleave(k, dd[h:], cp)
        else:
            if rd: k('s_waitcnt lgkmcnt(0)')
            for x in cp: k(x)
        if wait is not None: k(f's_waitcnt vmcnt({wait * c.G})\ns_barrier')
    step(0, False, c.NST - 2)
    cnt = c.NSTAGES - c.NST
    iters = cnt // c.NST
    if iters:
        L = k.label('lloop')
        k(f's_mov_b32 s{c.sCnt}, {iters}\n{L}:')
        for i in range(c.NST): step((1 + i) % c.NST, True, c.NST - 2)
        k(f's_sub_u32 s{c.sCnt}, s{c.sCnt}, 1\ns_cmp_lg_u32 s{c.sCnt}, 0\ns_cbranch_scc1 {L}')
    for t in range(1 + iters * c.NST, c.NSTAGES):
        step(t % c.NST, t <= cnt, None if t == c.NSTAGES - 1 else min(c.NST - 2, c.NSTAGES - 2 - t))

def t1_worker(k, c, work):
    assert c.NST % 2 == 0
    k('s_barrier')
    def step(slot, first, bar):
        for x in work(slot, slot & 1)[0]: k(x)
        if not first:
            for x in work((slot - 1) % c.NST, (slot & 1) ^ 1)[1]: k(x)
        k('s_waitcnt lgkmcnt(0)')
        if bar: k('s_barrier')
    step(0, True, True)
    iters = (c.NSTAGES - 2) // c.NST
    L = k.label('wloop')
    k(f's_mov_b32 s{c.sCnt}, {iters}\n{L}:')
    for i in range(c.NST): step((1 + i) % c.NST, False, True)
    k(f's_sub_u32 s{c.sCnt}, s{c.sCnt}, 1\ns_cmp_lg_u32 s{c.sCnt}, 0\ns_cbranch_scc1 {L}')
    for t in range(1 + iters * c.NST, c.NSTAGES): step(t % c.NST, False, t < c.NSTAGES - 1)
    for x in work((c.NSTAGES - 1) % c.NST, (c.NSTAGES - 1) & 1)[1]: k(x)

def lane_setup(k, vl, sw):
    k(f'v_lshrrev_b32 v{vl}, 6, v0\ns_nop 0\nv_readfirstlane_b32 s{sw}, v{vl}\nv_and_b32 v{vl}, 63, v0')

def tr_lane_terms(k, vl, vg, vr, vc):
    k(f'v_lshrrev_b32 v{vg}, 4, v{vl}\nv_bfe_u32 v{vr}, v{vl}, 2, 2')
    k(f'v_and_b32 v{vc}, 1, v{vl}\nv_lshlrev_b32 v{vc}, 1, v{vc}\nv_bfe_u32 v{vc+1}, v{vl}, 1, 1\nv_or_b32 v{vc}, v{vc}, v{vc+1}')

def gateup_kernel():
    c = T1(); c.SUB, c.NST, c.NSTAGES, c.MT, c.NT, c.G = 2, 4, 32, 2, 7, 8
    XB = 16384; UP = 7168 + 128; c.SB = 30976; DUMMY = c.SB * c.NST
    k = K('gateup_kernel', 256, 256, DUMMY + 1024, vgpr=256 + 72 + SSN, sgpr=48, accum=256)
    guard(k, 256)
    stamp(k, 0)
    k(f's_load_dwordx2 s[4:5], s[0:1], {ARG_WS}\ns_load_dwordx4 s[36:39], s[0:1], {ARG_WG}')
    VL = 224; SW = 16
    lane_setup(k, VL, SW)
    k('s_and_b32 s17, s2, 1\ns_lshl_b32 s17, s17, 2\ns_bfe_u32 s18, s2, 0x20003\ns_add_u32 s17, s17, s18')
    k('s_bfe_u32 s18, s2, 0x20001\ns_lshl_b32 s18, s18, 3\ns_lshr_b32 s19, s2, 5\ns_add_u32 s18, s18, s19')
    vD = 225
    LW, LE = k.label('w'), k.label('e')
    k(f's_cmp_lt_u32 s{SW}, 2\ns_cbranch_scc1 {LW}')
    k(f's_sub_u32 s22, s{SW}, 2\ns_lshl_b32 s24, s22, 13\ns_lshl_b32 s22, s22, 2\ns_lshl_b32 s23, s17, 3\ns_add_u32 s22, s22, s23\ns_lshl_b32 s22, s22, 16')
    k(f'v_lshlrev_b32 v240, 4, v{VL}\nv_add_u32 v240, s22, v240')
    for i in range(8): k(f'v_add_u32 v{vD+i}, {(i>>1)*65536 + (i&1)*1024}, v240')
    k(f's_mov_b32 s27, 2048\ns_add_u32 s25, s24, {7*1024}\ns_mov_b32 s30, {c.SB}')
    k('s_waitcnt lgkmcnt(0)')
    srd_off(k, 8, 4, WS_HN, 4*MB)
    k(f's_branch {LE}')
    k(LW + ':')
    k(f's_mul_i32 s24, s{SW}, {UP}\ns_add_u32 s24, s24, {XB}\ns_mul_i32 s22, s18, 224')
    for i in range(7):
        k(f'v_add_u32 v240, {i*64}, v{VL}\nv_mul_u32_u24 v241, 4682, v240\nv_lshrrev_b32 v241, 16, v241\nv_mul_u32_u24 v241, {7168-224}, v241\nv_lshl_add_u32 v241, v240, 4, v241\nv_add_u32 v{vD+i}, s22, v241')
    k(f'v_mov_b32 v{vD+7}, 0x7f000000\ns_mov_b32 s27, {32*7168}\ns_mov_b32 s25, {DUMMY}\ns_mov_b32 s30, 0')
    k('s_waitcnt lgkmcnt(0)')
    k(f's_cmp_eq_u32 s{SW}, 0\ns_cselect_b32 s8, s36, s38\ns_cselect_b32 s9, s37, s39\ns_and_b32 s9, s9, 0xffff\ns_mov_b32 s10, {1024*7168}\ns_mov_b32 s11, 0x00020000')
    k(LE + ':')
    k('s_mov_b32 s26, 0\ns_mov_b32 s31, s25')
    def dma(slot):
        r = [f's_add_u32 m0, s24, {slot*c.SB + j*1024}\ns_nop 0\nbuffer_load_dwordx4 v{vD+j}, s[8:11], s26 offen lds' for j in range(7)]
        r.append(f's_mov_b32 m0, s{31+slot}\ns_nop 0\nbuffer_load_dwordx4 v{vD+7}, s[8:11], s26 offen lds')
        return r
    c.dma = dma; c.adv = 's_add_u32 s26, s26, s27'
    c.vX = [233 + i for i in range(4)]; c.vW = [244 + i for i in range(4)]
    def late():
        for sl in range(1, 4): k(f's_add_u32 s{31+sl}, s{30+sl}, s30')
        srd_off(k, 40, 4, WS_SS, 131072 * SSN // 16)
        k(f'v_and_b32 v237, 31, v{VL}\nv_lshlrev_b32 v237, 4, v237\nv_lshrrev_b32 v241, 5, v{VL}\nv_lshl_add_u32 v237, v241, 11, v237')
        k(f's_lshl_b32 s44, s17, 2\ns_add_u32 s44, s44, s{SW}\ns_lshl_b32 s44, s44, 13\ns_add_u32 s45, s44, 4096')
        k(f's_lshl_b32 s22, s{SW}, 12\nv_lshlrev_b32 v240, 4, v{VL}\nv_add_u32 v240, s22, v240')
        for sl in range(4): k(f'v_add_u32 v{c.vX[sl]}, {sl*c.SB}, v240')
        tr_lane_terms(k, VL, 240, 241, 242)
        k(f'v_and_b32 v243, 1, v240\nv_mul_u32_u24 v243, {UP}, v243\nv_lshrrev_b32 v240, 1, v240\nv_lshl_add_u32 v240, v240, 3, v241\nv_mul_u32_u24 v240, 224, v240')
        k('v_add_u32 v243, v243, v240\nv_lshl_add_u32 v243, v242, 3, v243')
        for sl in range(4): k(f'v_add_u32 v{c.vW[sl]}, {sl*c.SB + XB}, v243')
    c.late = late
    c.tailx = [f'buffer_load_dwordx4 {a_(72+mt*16+4*q, 4)}, v237, s[40:43], s{44+mt} offen offset:{q*512}' for mt in range(2) for q in range(4)]
    c.xoff = lambda mt, j: (mt * 2 + j) * 1024
    c.woff = lambda nt, j, hf: (j * 16 + hf * 4) * 224 + nt * 32
    c.swap = lambda nt: False
    c.RS, c.DS, c.BP, c.GA = 8, 0, 2, 4
    c.sCnt = 28
    t1_mainloop(k, c)
    srd_off(k, 8, 4, WS_HH, 64*224*1024)
    k(f's_lshl_b32 s22, s17, 3\ns_lshl_b32 s23, s{SW}, 1\ns_add_u32 s22, s22, s23\ns_mul_i32 s22, s22, 224\ns_mul_i32 s23, s18, 7\ns_add_u32 s22, s22, s23\ns_lshl_b32 s22, s22, 10')
    k(f's_add_u32 s23, s22, {224*1024}')
    k(f'v_lshlrev_b32 v240, 4, v{VL}\nv_add_u32 v241, 0x1000, v240')
    for mt in range(2):
        for i in range(8): k(f'v_accvgpr_read_b32 v{225+i}, a{72+mt*SSN//2+i}')
        for i in range(8, SSN // 2): k(f'v_accvgpr_read_b32 v233, a{72+mt*SSN//2+i}\nv_add_f32 v{225+i%8}, v{225+i%8}, v233')
        for i in range(4): k(f'v_add_f32 v{225+i}, v{225+i}, v{229+i}')
        k('v_add_f32 v225, v225, v226\nv_add_f32 v227, v227, v228\nv_add_f32 v225, v225, v227')
        xhalf_add(k, 225, 226)
        k(f'v_mov_b32 v226, {f2u(1e-5)}\nv_fmac_f32 v226, {f2u(1/1024)}, v225\nv_rsq_f32 v227, v226\nv_sqrt_f32 v{246+4*mt}, v226\ns_nop 0\nv_mul_f32 v{244+4*mt}, {f2u(-LOG2E)}, v227')
    for nt in range(7):
        for mt in range(2):
            b = (nt * 2 + mt) * 16
            for i in range(0, 8, 2): k(f'v_pk_mul_f32 {v(b+i,2)}, {v(b+i,2)}, {v(244+4*mt,2)} op_sel_hi:[1,0]')
            for i in range(8): k(f'v_exp_f32 v{b+i}, v{b+i}')
            for i in range(0, 8, 2): k(f'v_pk_fma_f32 {v(b+i,2)}, {v(b+i,2)}, {v(246+4*mt,2)}, {v(246+4*mt,2)} op_sel_hi:[1,0,0]')
            for i in range(8): k(f'v_rcp_f32 v{b+i}, v{b+i}')
            for i in range(0, 8, 2): k(f'v_pk_mul_f32 {v(b+8+i,2)}, {v(b+i,2)}, {v(b+8+i,2)}')
            for i in range(4): k(f'v_cvt_pk_bf16_f32 v{b+i}, v{b+8+2*i}, v{b+9+2*i}')
            k(f'buffer_store_dwordx4 v[{b}:{b+3}], v{240 + nt//4}, s[8:11], s{22+mt} offen offset:{(nt%4)*1024}')
    stamp_end(k)
    return k
```

```python
from common import *
from t1 import T1, t1_mainloop, t1_loader, t1_worker, lane_setup, tr_lane_terms
def t3_kernel(name, KT, ws_x, arg_w, down):
    c = T1(); c.SUB, c.NST, c.NSTAGES, c.MT, c.NT, c.KS, c.G = 2, 6, KT // 4, 2, 1, 2, 6
    c.SB = 24576; XB = 16384; WBL = c.SB * c.NST
    k = K(name, 256, 512 if down else 768, WBL + 4096, vgpr=160, sgpr=56)
    guard(k, 256)
    stamp(k, 0)
    k(f's_load_dwordx2 s[4:5], s[0:1], {ARG_WS}\ns_load_dwordx2 s[6:7], s[0:1], {arg_w}\ns_load_dwordx2 s[36:37], s[0:1], {ARG_OUT if down else ARG_X}')
    FR, WB, RES, VL, vXd, vWd, VN, VP, MU, MX, VB, T = 32, 80, 96, 112, 113, 114, 116, 118, 120, 124, 127, 150
    SW = 16; c.sCnt = 28
    lane_setup(k, VL, SW)
    k('s_and_b32 s17, s2, 3\ns_lshl_b32 s17, s17, 2\ns_bfe_u32 s18, s2, 0x20003\ns_add_u32 s17, s17, s18')
    k('s_bfe_u32 s18, s2, 0x10002\ns_lshl_b32 s18, s18, 3\ns_lshr_b32 s19, s2, 5\ns_add_u32 s18, s18, s19')
    c.vX = [128 + i for i in range(6)]; c.vW = [140 + i for i in range(6)]
    MAIN = k.label('main')
    k(f's_cmp_lt_u32 s{SW}, 4\ns_cbranch_scc1 {MAIN}')
    if not down:
        LOAD = k.label('load')
        k(f's_cmp_lt_u32 s{SW}, 8\ns_cbranch_scc1 {LOAD}')
        k(f's_sub_u32 s{SW}, s{SW}, 8\ns_lshl_b32 s30, s17, 2\ns_add_u32 s30, s30, s{SW}\ns_lshl_b32 s24, s{SW}, 12\ns_waitcnt lgkmcnt(0)')
        srd_off(k, 48, 4, WS_FL, 262144)
        k(f's_lshl_b32 s22, s2, 2\ns_add_u32 s22, s22, s{SW}\ns_lshl_b32 s22, s22, 8\nv_lshlrev_b32 v{T}, 2, v{VL}\nv_mov_b32 v{T+1}, 0\nbuffer_store_dword v{T+1}, v{T}, s[48:51], s22 offen')
        srd_off(k, 48, 4, WS_MEANX, 65536)
        k(f's_and_b32 s22, s{SW}, 1\ns_lshl_b32 s22, s22, 10\ns_add_u32 m0, s22, {WBL}\ns_add_u32 s22, s22, {WS_WBAR - WS_MEANX}\nv_lshlrev_b32 v{T}, 4, v{VL}')
        k(f'buffer_load_dwordx4 v{T}, s[48:51], s22 offen lds')
        k(f'v_and_b32 v{MX+2}, 31, v{VL}\nv_lshlrev_b32 v{MX+2}, 2, v{MX+2}\ns_lshl_b32 s22, s30, 7\nbuffer_load_dword v{MX}, v{MX+2}, s[48:51], s22 offen')
        k(f'v_lshrrev_b32 v{VB}, 5, v{VL}\nv_lshlrev_b32 v{VB}, 4, v{VB}\nv_add_u32 v{VB}, {WBL}, v{VB}')
        for i in range(4): k(f'v_mov_b32 v{MU+i}, 0')
        k(f'v_add_u32 v{T}, s24, v{T}')
        for sl in range(6): k(f'v_add_u32 v{c.vX[sl]}, {sl*c.SB}, v{T}')
        k('s_waitcnt vmcnt(0)')
        def work(slot, st):
            rd = []
            for kt in range(4): rd += [f'ds_read_b128 {v(st*32+4*kt, 4)}, v{c.vX[slot]} offset:{kt*1024}', f'ds_read_b128 {v(st*32+16+4*kt, 4)}, v{VB} offset:{kt*32}']
            return rd + [f'v_add_u32 v{VB}, 128, v{VB}'], [f'v_dot2c_f32_bf16 v{MU+(i&3)}, v{st*32+i}, v{st*32+16+i}' for i in range(16)]
        t1_worker(k, c, work)
        k(f's_nop 2\nv_add_f32 v{MU}, v{MU}, v{MU+1}\nv_add_f32 v{MU+2}, v{MU+2}, v{MU+3}\nv_add_f32 v{MU}, v{MU}, v{MU+2}')
        xhalf_add(k, MU, MU + 1)
        k(f'v_add_f32 v{MU}, v{MU}, v{MX}\ns_lshl_b32 s22, s{SW}, 7\ns_add_u32 s22, s22, {WBL + 2048}\nv_add_u32 v{T}, s22, v{MX+2}\nds_write_b32 v{T}, v{MU}\ns_waitcnt lgkmcnt(0)\ns_barrier\ns_endpgm')
        k(LOAD + ':')
    k(f's_sub_u32 s{SW}, s{SW}, 4')
    k(f's_lshl_b32 s30, s17, 2\ns_add_u32 s30, s30, s{SW}\ns_mul_i32 s22, s30, {KT*1024}\nv_lshlrev_b32 v{vXd}, 4, v{VL}\nv_add_u32 v{vXd}, s22, v{vXd}')
    k(f'v_lshrrev_b32 v{T}, 3, v{VL}\nv_and_b32 v{T+1}, 7, v{VL}\nv_bfe_u32 v{T+2}, v{VL}, 4, 1\nv_lshlrev_b32 v{T+2}, 2, v{T+2}\nv_xor_b32 v{T+1}, v{T+1}, v{T+2}')
    k(f'v_lshlrev_b32 v{T}, 11, v{T}\nv_lshl_add_u32 v{T}, v{T+1}, 4, v{T}\ns_lshl_b32 s22, s{SW}, 15\ns_lshl_b32 s23, s18, 7\ns_add_u32 s22, s22, s23')
    k(f'v_add_u32 v{vWd}, s22, v{T}\nv_add_u32 v{vWd+1}, 0x4000, v{vWd}')
    k(f's_lshl_b32 s24, s{SW}, 12\ns_lshl_b32 s25, s{SW}, 11\ns_add_u32 s25, s25, {XB}\ns_mov_b32 s26, 0\ns_mov_b32 s27, 0')
    k('s_waitcnt lgkmcnt(0)')
    srd_off(k, 8, 4, ws_x, 64 * KT * 1024); srd(k, 12, 6, KT * 16 * 2048)
    def dma(slot):
        r = [f's_add_u32 m0, s25, {slot*c.SB + b*1024}\ns_nop 0\nbuffer_load_dwordx4 v{vWd+b}, s[12:15], s27 offen lds' for b in range(2)]
        for j in range(4):
            pre = f's_add_u32 m0, s24, {slot*c.SB}\ns_nop 0\n' if j == 0 else ''
            r.append(pre + f'buffer_load_dwordx4 v{vXd}, s[8:11], s26 offen offset:{j*1024} lds')
        return r
    adv = f's_add_u32 s26, s26, 4096\ns_add_u32 s27, s27, {64*2048}'
    t1_loader(k, c, dma, adv)
    k('s_endpgm')
    k(MAIN + ':')
    k('s_setprio 2\ns_and_b32 s20, s16, 1\ns_lshr_b32 s21, s16, 1')
    k(f's_lshl_b32 s22, s21, 13\nv_lshlrev_b32 v{T}, 4, v{VL}\nv_add_u32 v{T}, s22, v{T}')
    for sl in range(6): k(f'v_add_u32 v{c.vX[sl]}, {sl*c.SB}, v{T}')
    k('s_lshl_b32 s30, s17, 2\ns_lshl_b32 s22, s21, 1\ns_add_u32 s30, s30, s22')
    k(f's_lshl_b32 s22, s30, 16\ns_lshl_b32 s23, s18, 1\ns_add_u32 s23, s23, s20\ns_lshl_b32 s29, s23, 6\ns_add_u32 s29, s29, s22')
    k(f'v_and_b32 v{MX+2}, 31, v{VL}\nv_lshlrev_b32 v{T}, 11, v{MX+2}\nv_lshrrev_b32 v{T+1}, 5, v{VL}\nv_lshl_add_u32 v{T}, v{T+1}, 4, v{T}\nv_add_u32 v{VN}, s29, v{T}\nv_add_u32 v{VN+1}, 0x10000, v{VN}')
    k(f's_lshl_b32 s29, s23, 11\ns_add_u32 s29, s29, s22\nv_lshlrev_b32 v{T}, 4, v{VL}\nv_add_u32 v{VP}, s29, v{T}\nv_add_u32 v{VP+1}, 0x10000, v{VP}')
    tr_lane_terms(k, VL, T, T+1, T+2)
    k(f'v_and_b32 v{T+3}, 1, v{T}\nv_lshlrev_b32 v{T+3}, 1, v{T+3}\ns_lshl_b32 s22, s20, 2\nv_add_u32 v{T+3}, s22, v{T+3}')
    k(f'v_lshrrev_b32 v{T+4}, 1, v{T+2}\nv_add_u32 v{T+3}, v{T+3}, v{T+4}\nv_lshrrev_b32 v{T+4}, 1, v{T+1}\nv_lshlrev_b32 v{T+4}, 2, v{T+4}\nv_xor_b32 v{T+3}, v{T+3}, v{T+4}')
    k(f'v_lshlrev_b32 v{T+3}, 4, v{T+3}\nv_and_b32 v{T+4}, 1, v{T+2}\nv_lshl_add_u32 v{T+3}, v{T+4}, 3, v{T+3}\nv_lshl_add_u32 v{T+3}, v{T+1}, 7, v{T+3}')
    k(f'v_lshrrev_b32 v{T+4}, 1, v{T}\nv_lshl_add_u32 v{T+3}, v{T+4}, 10, v{T+3}')
    for sl in range(6): k(f'v_add_u32 v{c.vW[sl]}, {sl*c.SB + XB}, v{T+3}')
    k('s_waitcnt lgkmcnt(0)')
    srd_off(k, 40, 4, WS_H, 8 * MB); srd(k, 44, 36, 4 * MB)
    if not down: srd_off(k, 48, 4, WS_SS, 2048 * 4 * SSN)
    c.tailx = []
    for mt in range(2):
        for q in range(2):
            if down: c.tailx.append(f'buffer_load_dwordx4 {v(RES+8*mt+4*q, 4)}, v{VP+mt}, s[40:43], 0 offen offset:{q*1024}')
            else:    c.tailx.append(f'buffer_load_dwordx4 {v(RES+8*mt+4*q, 4)}, v{VN+mt}, s[44:47], 0 offen offset:{q*32}')
    c.frag = lambda i, n: v(FR + i, n)
    c.xoff = lambda mt, kt: (mt * 4 + kt) * 1024
    c.woff = lambda nt, kt, hf: kt * 2048 + hf * 512
    c.swap = lambda nt: False
    c.RS, c.DS, c.BP, c.GA = 3, 0, 0, 0
    c.loader = True; c.dma = None
    t1_mainloop(k, c)
    for q in range(16):
        k(f'v_lshlrev_b32 v{T+2}, 16, v{RES+q}\nv_and_b32 v{T+3}, 0xffff0000, v{RES+q}\nv_add_f32 v{2*q}, v{2*q}, v{T+2}\nv_add_f32 v{2*q+1}, v{2*q+1}, v{T+3}')
    if not down:
        k(f's_lshl_b32 s22, s21, 8\ns_add_u32 s22, s22, {WBL + 2048}\nv_lshl_add_u32 v{T}, v{MX+2}, 2, s22\ns_barrier\nds_read2_b32 {v(MU, 2)}, v{T} offset0:0 offset1:32')
    for i in range(16): k(f'v_cvt_pk_bf16_f32 v{RES+i}, v{2*i}, v{2*i+1}')
    for mt in range(2):
        for q in range(2):
            if down: k(f'buffer_store_dwordx4 {v(RES+8*mt+4*q, 4)}, v{VN+mt}, s[44:47], 0 offen offset:{q*32}')
            else:    k(f'buffer_store_dwordx4 {v(RES+8*mt+4*q, 4)}, v{VP+mt}, s[40:43], 0 offen offset:{q*1024}')
    if not down:
        k(f's_mov_b32 s29, {WS_HN - WS_H}\ns_waitcnt lgkmcnt(0)')
        for mt in range(2):
            for i in range(16): k(f'v_sub_f32 v{16*mt+i}, v{16*mt+i}, v{MU+mt}')
            for i in range(8): k(f'v_cvt_pk_bf16_f32 v{FR+8*mt+i}, v{16*mt+2*i}, v{16*mt+2*i+1}')
            for q in range(2): k(f'buffer_store_dwordx4 {v(FR+8*mt+4*q, 4)}, v{VP+mt}, s[40:43], s29 offen offset:{q*1024}')
        k(f'v_mul_f32 v{MU}, v0, v0\nv_mul_f32 v{MU+1}, v16, v16')
        for i in range(1, 16): k(f'v_fmac_f32 v{MU}, v{i}, v{i}\nv_fmac_f32 v{MU+1}, v{16+i}, v{16+i}')
        xhalf_add(k, MU, MU + 2); xhalf_add(k, MU + 1, MU + 2)
        k(f'v_lshlrev_b32 v{MX+2}, 4, v{MX+2}\ns_lshr_b32 s22, s23, 2\ns_lshl_b32 s22, s22, 9\ns_and_b32 s23, s23, 3\ns_lshl_b32 s23, s23, 2\ns_add_u32 s23, s23, s22\ns_lshl_b32 s22, s30, 12\ns_add_u32 s22, s22, s23\ns_add_u32 s23, s22, 4096\ns_mov_b32 exec_hi, 0')
        for mt in range(2): k(f'buffer_store_dword v{MU+mt}, v{MX+2}, s[48:51], s{22+mt} offen')
    stamp_end(k)
    return k
```

```python
import sys; sys.path.insert(0, 'gen')
from common import *
from ln import ln1_kernel
from t1 import gateup_kernel
from qkv import qkv_kernel
from t3 import t3_kernel as t2_kernel
from attn import attn_kernel
NAME = 'sequential_preLN__softmax_full_mha__glu_gated_glu__prompt'
hdr = ''.join(l for l in open(f'cdna_kernels/{NAME}.s.ref') if l.startswith(';') and '@launch' not in l and 'Override' not in l and 'grid=ceil' not in l)
ks = [qkv_kernel(), attn_kernel(), t2_kernel('proj_kernel', 64, WS_O, ARG_WO, False),
      gateup_kernel(), t2_kernel('down_kernel', 224, WS_HH, ARG_WD, True)]
if os.environ.get('ONLY'): ks = [k for k in ks if k.name.split('_')[0] in os.environ['ONLY'].split(',')]
SF = os.environ.get('SF', 'sc0_sc1'); SK = os.environ.get('SK', 'qkv,attn,proj,gateup').split(',')
if SF != '0':
    for k in ks:
        if k.name.split('_')[0] in SK:
            k.l = [x + ' ' + SF.replace('_', ' ') if 'buffer_store_dwordx4' in x else x for x in k.l]
out = sys.argv[1] if len(sys.argv) > 1 else f'cdna_kernels/{NAME}.s'
open(out, 'w').write(build(ks, header=hdr))
```

```python
from common import *
class T1:
    pass
def t1_mainloop(k, c):
    KS = getattr(c, 'KS', 1)
    FS = (c.MT + c.NT) * 4 * KS
    fr = getattr(c, 'frag', a_); acc = getattr(c, 'acc', v)
    def xf(s_, ks, mt): return s_ * FS + ks * (c.MT + c.NT) * 4 + mt * 4
    def wf(s_, ks, nt): return s_ * FS + ks * (c.MT + c.NT) * 4 + c.MT * 4 + nt * 4
    c.xf = xf
    def reads(slot, j, s_):
        r = []
        for ks in range(KS):
            kt = j * KS + ks
            xs = [(xf(s_, ks, mt), f'ds_read_b128 {fr(xf(s_, ks, mt), 4)}, ' + (c.xaddr(slot, mt, kt) if hasattr(c, 'xaddr') else f'v{c.vX[slot]} offset:{c.xoff(mt, kt)}')) for mt in range(c.MT)]
            ws = [(wf(s_, ks, nt), f'ds_read_b64_tr_b16 {fr(wf(s_, ks, nt) + 2 * hf, 2)}, v{c.vW[slot] + nt * getattr(c, "wst", 0)} offset:{c.woff(nt, kt, hf)}') for nt in range(c.NT) for hf in range(2)]
            if 'x' in os.environ.get('DX', '') and k.name.startswith('down'): xs = []
            if 'w' in os.environ.get('DX', '') and k.name.startswith('down'): ws = []
            r += xs[:1] + ws[:2] + xs[1:] + ws[2:]
            if hasattr(c, 'xreads'): r += c.xreads(s_, ks)
        return r
    def mfmas(s_):
        r = []
        for ks in range(KS):
            for nt in range(c.NT):
                for mt in range(c.MT):
                    d = acc((nt * c.MT + mt) * 16, 16)
                    A, B = fr(wf(s_, ks, nt), 4), fr(xf(s_, ks, mt), 4)
                    if c.swap(nt): A, B = B, A
                    r.append(((wf(s_, ks, nt), xf(s_, ks, mt)), f'v_mfma_f32_32x32x16_bf16 {d}, {A}, {B}, {d}'))
        return r
    q = []
    def need(tags):
        last = max([i for i, t in enumerate(q) if t in tags], default=-1)
        if last >= 0:
            n = len(q) - 1 - last
            n = min(n, 14)
            k(f's_waitcnt lgkmcnt({n})')
            del q[:len(q) - n]
    def run(mf, plan):
        for i, (tags, ins) in enumerate(mf):
            need(tags)
            k(ins)
            for t, x in plan[i]:
                if t == 'bar':
                    k(x); del q[:]
                elif isinstance(t, tuple):
                    need(t); k(x)
                else:
                    k(x)
                    if t is not None: q.append(t)
    def spread(plan, items, lo, hi):
        n = hi - lo
        for i in range(n): plan[lo + i] += items[i * len(items) // n:(i + 1) * len(items) // n]
    tailx = getattr(c, 'tailx', [])
    def stage(t, slot, dmaB, dmaA, wait):
        cnt = c.NSTAGES - c.NST
        add = len(tailx) if (t is not None and t > cnt) else 0
        d = [(None, x) for x in c.dma((slot - 1) % c.NST)[c.GA:]] if dmaB else []
        if d: d[-1] = (None, d[-1][1] + '\n' + c.adv)
        dA = [(None, x) for x in c.dma(slot)[:c.GA]] if dmaA else []
        if t == cnt + 1: d = [(None, x) for x in tailx]
        nd = max(1, c.SUB - 1)
        for j in range(c.SUB):
            s_ = j & 1
            mf = mfmas(s_); n = len(mf)
            plan = [[] for _ in mf]
            if j < c.SUB - 1:
                spread(plan, reads(slot, j + 1, s_ ^ 1), 0, c.RS)
                spread(plan, d[j * len(d) // nd:(j + 1) * len(d) // nd], c.DS, n)
            elif wait is not None:
                plan[c.BP].append(('bar', 's_waitcnt lgkmcnt(0)\ns_barrier' if LD else f's_waitcnt vmcnt({int(wait * c.G) + add}) lgkmcnt(0)\ns_barrier'))
                spread(plan, reads((slot + 1) % c.NST, 0, s_ ^ 1), c.BP, min(n, c.BP + c.RS))
                spread(plan, dA, c.BP, n)
            if hasattr(c, 'extra'): spread(plan, c.extra(t, j, s_), c.XS, n)
            run(mf, plan)
    assert c.SUB % 2 == 0
    stamp(k, 1 + getattr(c, 'sb', 0))
    LD = getattr(c, 'loader', False)
    if LD:
        real_dma = c.dma; c.dma = lambda slot: []; c.adv = ''; c.GA = 0
    if hasattr(c, 'pro'): c.pro()
    else:
        for x in c.dma(0): k(x)
        k(c.adv)
        if hasattr(c, 'late'): c.late()
        pd = []
        for t in range(1, c.NST - 1):
            pd += c.dma(t) if not LD else ['']; pd[-1] += '\n' + c.adv
        pd += c.dma(c.NST - 1)[:c.GA]
        interleave(k, pd, [f'v_mov_b32 v{i}, 0' for i in range(c.MT * c.NT * 16)])
        k('s_barrier' if LD else f's_waitcnt vmcnt({(c.NST - 2) * c.G + c.GA})\ns_barrier')
    stamp(k, 2 + getattr(c, 'sb', 0))
    for t_, x in reads(0, 0, 0): k(x); q.append(t_)
    if hasattr(c, 'atP0'): c.atP0()
    cnt = c.NSTAGES - c.NST
    peel = getattr(c, 'peel', [])
    for t, w in enumerate(peel): stage(t, t, True, True, w / c.G)
    iters = 0 if getattr(c, 'unroll', False) else (cnt - len(peel)) // c.NST
    if iters:
        L = k.label('loop')
        k(f's_mov_b32 s{c.sCnt}, {iters}')
        k(L + ':')
        q0 = list(q)
        for sl in range(c.NST): stage(None, sl, True, True, c.NST - 2)
        assert q == q0, (q, q0)
        k(f's_sub_u32 s{c.sCnt}, s{c.sCnt}, 1\ns_cmp_lg_u32 s{c.sCnt}, 0\ns_cbranch_scc1 {L}')
    stamp(k, 3 + getattr(c, 'sb', 0))
    for t in range(len(peel) + iters * c.NST, c.NSTAGES):
        stage(t, t % c.NST, t <= cnt, t < cnt, None if t == c.NSTAGES - 1 else min(c.NST - 2, c.NSTAGES - 2 - t))
    k('s_waitcnt vmcnt(0)\ns_nop 14')
    stamp(k, 4 + getattr(c, 'sb', 0))

def t1_loader(k, c, dma, adv, work=None):
    for t in range(c.NST):
        for x in dma(t): k(x)
        k(adv)
        if t == 0 and hasattr(c, 'llate'): c.llate()
    k(f's_waitcnt vmcnt({(c.NST - 1) * c.G})\ns_barrier')
    def step(slot, d, wait):
        rd, cp = work(slot) if work else ([], [])
        for x in rd: k(x)
        if d:
            dd = dma((slot - 1) % c.NST); dd[-1] += '\n' + adv
            h = len(dd) // 3
            for x in dd[:h]: k(x)
            if rd: k('s_waitcnt lgkmcnt(0)')
            interleave(k, dd[h:], cp)
        else:
            if rd: k('s_waitcnt lgkmcnt(0)')
            for x in cp: k(x)
        if wait is not None: k(f's_waitcnt vmcnt({wait * c.G})\ns_barrier')
    step(0, False, c.NST - 2)
    cnt = c.NSTAGES - c.NST
    iters = cnt // c.NST
    if iters:
        L = k.label('lloop')
        k(f's_mov_b32 s{c.sCnt}, {iters}\n{L}:')
        for i in range(c.NST): step((1 + i) % c.NST, True, c.NST - 2)
        k(f's_sub_u32 s{c.sCnt}, s{c.sCnt}, 1\ns_cmp_lg_u32 s{c.sCnt}, 0\ns_cbranch_scc1 {L}')
    for t in range(1 + iters * c.NST, c.NSTAGES):
        step(t % c.NST, t <= cnt, None if t == c.NSTAGES - 1 else min(c.NST - 2, c.NSTAGES - 2 - t))

def t1_worker(k, c, work):
    assert c.NST % 2 == 0
    k('s_barrier')
    def step(slot, first, bar):
        for x in work(slot, slot & 1)[0]: k(x)
        if not first:
            for x in work((slot - 1) % c.NST, (slot & 1) ^ 1)[1]: k(x)
        k('s_waitcnt lgkmcnt(0)')
        if bar: k('s_barrier')
    step(0, True, True)
    iters = (c.NSTAGES - 2) // c.NST
    L = k.label('wloop')
    k(f's_mov_b32 s{c.sCnt}, {iters}\n{L}:')
    for i in range(c.NST): step((1 + i) % c.NST, False, True)
    k(f's_sub_u32 s{c.sCnt}, s{c.sCnt}, 1\ns_cmp_lg_u32 s{c.sCnt}, 0\ns_cbranch_scc1 {L}')
    for t in range(1 + iters * c.NST, c.NSTAGES): step(t % c.NST, False, t < c.NSTAGES - 1)
    for x in work((c.NSTAGES - 1) % c.NST, (c.NSTAGES - 1) & 1)[1]: k(x)

def lane_setup(k, vl, sw):
    k(f'v_lshrrev_b32 v{vl}, 6, v0\ns_nop 0\nv_readfirstlane_b32 s{sw}, v{vl}\nv_and_b32 v{vl}, 63, v0')

def tr_lane_terms(k, vl, vg, vr, vc):
    k(f'v_lshrrev_b32 v{vg}, 4, v{vl}\nv_bfe_u32 v{vr}, v{vl}, 2, 2')
    k(f'v_and_b32 v{vc}, 1, v{vl}\nv_lshlrev_b32 v{vc}, 1, v{vc}\nv_bfe_u32 v{vc+1}, v{vl}, 1, 1\nv_or_b32 v{vc}, v{vc}, v{vc+1}')

def poll(k, va, soff, full):
    P, D = k.label('poll'), k.label('rdy')
    k(f's_mov_b32 s50, 0x40000\n{P}:\nbuffer_load_dword v251, v{va}, s[52:55], {soff} offen sc1\ns_waitcnt vmcnt(0)\nv_cmp_ne_u32 vcc, 0, v251')
    k(f's_cmp_eq_u32 vcc_lo, {full}\ns_cbranch_scc1 {D}\ns_sub_u32 s50, s50, 1\ns_cmp_lg_u32 s50, 0\ns_cbranch_scc1 {P}\n{D}:\ns_mov_b64 exec, -1')

DNST = int(os.environ.get('DN', 5)); vWd = 252
def down_w(slot):
    return [f's_add_u32 m0, s25, {slot*32768 + (b&1)*1024 + (b>>1)*8192}\ns_nop 0\nbuffer_load_dwordx4 v{vWd+b}, s[12:15], s27 offen lds' for b in range(4)]
def down_pre(k, VL, SW):
    T = 234
    k('s_bfe_u32 s19, s2, 0x10002\ns_and_b32 s48, s2, 1\ns_lshl_b32 s48, s48, 3\ns_bfe_u32 s49, s2, 0x30003\ns_add_u32 s48, s48, s49')
    k('s_bfe_u32 s49, s2, 0x10001\ns_lshl_b32 s49, s49, 2\ns_lshr_b32 s20, s2, 6\ns_add_u32 s49, s49, s20')
    k(f'v_lshrrev_b32 v{T}, 3, v{VL}\nv_and_b32 v{T+1}, 7, v{VL}\nv_bfe_u32 v{T+2}, v{VL}, 4, 1\nv_lshlrev_b32 v{T+2}, 2, v{T+2}\nv_xor_b32 v{T+1}, v{T+1}, v{T+2}')
    k(f'v_lshlrev_b32 v{T}, 11, v{T}\nv_lshl_add_u32 v{T}, v{T+1}, 4, v{T}\ns_lshl_b32 s22, s{SW}, 15\ns_lshl_b32 s23, s49, 8\ns_add_u32 s22, s22, s23\ns_mul_i32 s23, s19, {1792*2048}\ns_add_u32 s22, s22, s23')
    k(f'v_add_u32 v{vWd}, s22, v{T}\nv_add_u32 v{vWd+1}, 0x4000, v{vWd}\nv_add_u32 v{vWd+2}, 128, v{vWd}\nv_add_u32 v{vWd+3}, 128, v{vWd+1}')
    k(f's_lshl_b32 s25, s{SW}, 11\ns_add_u32 s25, s25, 16384\ns_mov_b32 s27, 0')
    srd(k, 12, 36, 3584 * 2048)
    k('s_barrier')
    r = []
    for t in range(DNST - 1): r += down_w(t); r[-1] += f'\ns_add_u32 s27, s27, {64*2048}'
    return r

def down_phase(k, VL, SW):
    c = T1(); c.SUB, c.NST, c.NSTAGES, c.MT, c.NT, c.KS, c.G = 2, DNST, 28, 2, 2, 2, 8
    c.SB = 32768; XB = 16384; c.sb = 5; c.sCnt = 28
    k.lds = max(k.lds, c.SB * c.NST)
    FR, RES, XC, vXd, VN, VP, VE, VF, T = 64, 128, 144, 176, 181, 183, 185, 187, 240
    c.vX = [190 + i for i in range(c.NST)]; c.vW = [200 + 2 * i for i in range(c.NST)]; c.wst = 1
    k(f's_lshl_b32 s46, s17, 2\ns_add_u32 s46, s46, s{SW}\ns_lshl_b32 s46, s46, 1\ns_lshr_b32 s47, s18, 4\ns_add_u32 s46, s46, s47\ns_lshl_b32 s46, s46, 10\ns_and_b32 s47, s18, 15\ns_lshl_b32 s47, s47, 2\ns_add_u32 s46, s46, s47')
    k(f's_and_b32 s20, s{SW}, 1\ns_lshr_b32 s21, s{SW}, 1')
    k('s_lshl_b32 s47, s48, 1\ns_add_u32 s47, s47, s21\ns_lshl_b32 s47, s47, 1\ns_add_u32 s47, s47, s19\ns_lshl_b32 s47, s47, 3\ns_add_u32 s47, s47, s49\ns_lshl_b32 s47, s47, 7')
    srd_off(k, 52, 4, WS_FL, 262144)
    k(f'v_lshlrev_b32 v{VF}, 7, v{VL}\nv_lshlrev_b32 v{VF+1}, 2, v{VL}\nv_mov_b32 v250, 1')
    stamp(k, 13)
    k('s_waitcnt vmcnt(0)')
    stamp(k, 11)
    k(f's_mov_b64 exec, 0xff\nbuffer_store_dword v250, v{VF}, s[52:55], s46 offen sc1\ns_mov_b64 exec, -1')
    k(f's_lshl_b32 s30, s48, 2\ns_add_u32 s30, s30, s{SW}\ns_mul_i32 s22, s30, {224*1024}\ns_mul_i32 s23, s19, {112*1024}\ns_add_u32 s22, s22, s23\nv_lshlrev_b32 v{VE}, 4, v{VL}\nv_add_u32 v{vXd}, s22, v{VE}')
    k(f's_lshl_b32 s24, s{SW}, 12\ns_mov_b32 s26, 0')
    k(f's_lshl_b32 s22, s21, 13\nv_add_u32 v{T}, s22, v{VE}')
    for sl in range(c.NST): k(f'v_add_u32 v{c.vX[sl]}, {sl*c.SB}, v{T}')
    tr_lane_terms(k, VL, T, T+1, T+2)
    k(f'v_and_b32 v{T+3}, 1, v{T}\nv_lshlrev_b32 v{T+3}, 1, v{T+3}\ns_lshl_b32 s22, s19, 2\nv_add_u32 v{T+3}, s22, v{T+3}')
    k(f'v_lshrrev_b32 v{T+4}, 1, v{T+2}\nv_add_u32 v{T+3}, v{T+3}, v{T+4}\nv_lshrrev_b32 v{T+4}, 1, v{T+1}\nv_lshlrev_b32 v{T+4}, 2, v{T+4}\nv_xor_b32 v{T+3}, v{T+3}, v{T+4}')
    k(f'v_lshlrev_b32 v{T+3}, 4, v{T+3}\nv_and_b32 v{T+4}, 1, v{T+2}\nv_lshl_add_u32 v{T+3}, v{T+4}, 3, v{T+3}\nv_lshl_add_u32 v{T+3}, v{T+1}, 7, v{T+3}')
    k(f'v_lshrrev_b32 v{T+4}, 1, v{T}\nv_lshl_add_u32 v{T+3}, v{T+4}, 10, v{T+3}\ns_lshl_b32 s22, s20, 13\nv_add_u32 v{T+3}, s22, v{T+3}\nv_xor_b32 v{T+4}, 64, v{T+3}')
    for sl in range(c.NST): k(f'v_add_u32 v{c.vW[sl]}, {sl*c.SB + XB}, v{T+3}\nv_add_u32 v{c.vW[sl]+1}, {sl*c.SB + XB}, v{T+4}')
    k('s_lshl_b32 s30, s48, 2\ns_lshl_b32 s22, s21, 1\ns_add_u32 s30, s30, s22\ns_lshl_b32 s22, s30, 16')
    k('s_lshl_b32 s23, s49, 1\ns_add_u32 s23, s23, s20\ns_lshl_b32 s23, s23, 1\ns_add_u32 s23, s23, s19\ns_lshl_b32 s29, s23, 6\ns_add_u32 s29, s29, s22')
    k(f'v_and_b32 v{T}, 31, v{VL}\nv_lshlrev_b32 v{T}, 11, v{T}\nv_lshrrev_b32 v{T+1}, 5, v{VL}\nv_lshl_add_u32 v{T}, v{T+1}, 4, v{T}\nv_add_u32 v{VN}, s29, v{T}\nv_add_u32 v{VN+1}, 0x10000, v{VN}')
    k(f's_lshl_b32 s29, s23, 11\ns_add_u32 s29, s29, s22\nv_add_u32 v{VP}, s29, v{VE}\nv_add_u32 v{VP+1}, 0x10000, v{VP}')
    k(f's_lshl_b32 s33, s2, 2\ns_add_u32 s33, s33, s{SW}\ns_lshl_b32 s31, s33, 12\ns_xor_b32 s32, s31, {4 << 14}')
    srd_off(k, 40, 4, WS_H, 4 * MB)
    for i in range(64): k(f'v_mov_b32 v{i}, 0')
    def dx(slot): return [(f's_add_u32 m0, s24, {slot*c.SB}\ns_nop 0\n' if j == 0 else '') + f'buffer_load_dwordx4 v{vXd}, s[8:11], s26 offen offset:{j*1024} lds' for j in range(4)]
    def pro():
        k('s_mov_b64 exec, 0xffff')
        poll(k, VF + 1, 's47', '0xffff')
        stamp(k, 5)
        for t in range(c.NST):
            for x in dx(t): k(x)
            if t < c.NST - 1: k('s_add_u32 s26, s26, 4096')
        k(f's_waitcnt vmcnt({(c.NST - 1) * 4})\ns_barrier')
    c.peel = [min((c.NST - 3 - t) * 4 + (t + 1) * 8, (c.NST - 2) * 8) for t in range(c.NST)]
    c.pro = pro
    c.dma = lambda slot: dx(slot) + down_w(slot); c.adv = f's_add_u32 s26, s26, 4096\ns_add_u32 s27, s27, {64*2048}'
    c.tailx = [f'buffer_load_dwordx4 {v(RES+8*mt+4*q, 4)}, v{VP+mt}, s[40:43], 0 offen offset:{q*1024}' for mt in range(2) for q in range(2)]
    c.frag = lambda i, n: v(FR + i, n)
    c.xoff = lambda mt, kt: (mt * 4 + kt) * 1024
    c.woff = lambda nt, kt, hf: kt * 2048 + hf * 512
    c.swap = lambda nt: False
    c.RS, c.DS, c.BP, c.GA = [int(x) for x in os.environ.get('DP', '5,0,0,4').split(',')]
    t1_mainloop(k, c)
    srd_off(k, 8, 4, WS_XC, 4 * MB); srd(k, 44, 38, 4 * MB)
    for i in range(4):
        for j in range(4): k(f'v_cvt_pk_bf16_f32 v{FR+4*i+j}, v{32+8*i+2*j}, v{33+8*i+2*j}')
        k(f'buffer_store_dwordx4 {v(FR+4*i, 4)}, v{VE}, s[8:11], s31 offen offset:{i*1024} sc1 ;x')
    def addbf(src):
        for q in range(16):
            k(f'v_lshlrev_b32 v{T+2}, 16, v{src+q}\nv_and_b32 v{T+3}, 0xffff0000, v{src+q}\nv_add_f32 v{2*q}, v{2*q}, v{T+2}\nv_add_f32 v{2*q+1}, v{2*q+1}, v{T+3}')
    addbf(RES)
    if 'w' in os.environ.get('MX', ''): k('s_waitcnt vmcnt(0)')
    stamp(k, 12)
    P, D = k.label('poll'), k.label('rdy')
    k(f's_mov_b32 s50, 0x40000\n{P}:')
    for i in range(4): k(f'buffer_load_dwordx4 {v(XC+4*i, 4)}, v{VE}, s[8:11], s32 offen offset:{i*1024} sc1')
    k(f's_waitcnt vmcnt(0)\nv_max_u32 v{T}, v{XC}, v{XC+1}')
    for i in range(2, 16, 2): k(f'v_max3_u32 v{T}, v{T}, v{XC+i}, v{XC+i+1}')
    k(f'v_cmp_eq_u32 vcc, -1, v{T}\ns_cbranch_vccz {D}\ns_sub_u32 s50, s50, 1\ns_cmp_lg_u32 s50, 0\ns_cbranch_scc1 {P}\n{D}:')
    stamp(k, 10)
    addbf(XC)
    for i in range(16): k(f'v_cvt_pk_bf16_f32 v{RES+i}, v{2*i}, v{2*i+1}')
    for i in range(4): k(f'buffer_store_dwordx4 {v(RES+4*i, 4)}, v{VN+i//2}, s[44:47], 0 offen offset:{(i%2)*32} ;x')

def gateup_kernel(fuse=False):
    c = T1(); c.SUB, c.NST, c.NSTAGES, c.MT, c.NT, c.G = 2, 4, 32, 2, 7, 8
    XB = 16384; UP = 7168 + 128; c.SB = 30976; DUMMY = c.SB * c.NST
    k = K('mlp_kernel' if fuse else 'gateup_kernel', 256, 256, DUMMY + 1024, vgpr=256 + 72 + SSN, sgpr=60, accum=256)
    guard(k, 256)
    stamp(k, 0)
    k(f's_load_dwordx2 s[4:5], s[0:1], {ARG_WS}\ns_load_dwordx4 s[36:39], s[0:1], {ARG_WG}')
    VL = 224; SW = 16
    lane_setup(k, VL, SW)
    k('s_and_b32 s17, s2, 1\ns_lshl_b32 s17, s17, 2\ns_bfe_u32 s18, s2, 0x20003\ns_add_u32 s17, s17, s18')
    k('s_bfe_u32 s18, s2, 0x20001\ns_lshl_b32 s18, s18, 3\ns_lshr_b32 s19, s2, 5\ns_add_u32 s18, s18, s19')
    vD = 225
    LW, LE = k.label('w'), k.label('e')
    k(f's_cmp_lt_u32 s{SW}, 2\ns_cbranch_scc1 {LW}')
    k(f's_sub_u32 s22, s{SW}, 2\ns_lshl_b32 s24, s22, 13\ns_lshl_b32 s22, s22, 2\ns_lshl_b32 s23, s17, 3\ns_add_u32 s22, s22, s23\ns_lshl_b32 s22, s22, 16')
    k(f'v_lshlrev_b32 v240, 4, v{VL}\nv_add_u32 v240, s22, v240')
    for i in range(8): k(f'v_add_u32 v{vD+i}, {(i>>1)*65536 + (i&1)*1024}, v240')
    k(f's_mov_b32 s27, 2048\ns_add_u32 s25, s24, {7*1024}\ns_mov_b32 s30, {c.SB}')
    k('s_waitcnt lgkmcnt(0)')
    srd_off(k, 8, 4, WS_HN, 4*MB)
    k(f's_branch {LE}')
    k(LW + ':')
    k(f's_mul_i32 s24, s{SW}, {UP}\ns_add_u32 s24, s24, {XB}\ns_mul_i32 s22, s18, 224')
    for i in range(7):
        k(f'v_add_u32 v240, {i*64}, v{VL}\nv_mul_u32_u24 v241, 4682, v240\nv_lshrrev_b32 v241, 16, v241\nv_mul_u32_u24 v241, {7168-224}, v241\nv_lshl_add_u32 v241, v240, 4, v241\nv_add_u32 v{vD+i}, s22, v241')
    k(f'v_mov_b32 v{vD+7}, 0x7f000000\ns_mov_b32 s27, {32*7168}\ns_mov_b32 s25, {DUMMY}\ns_mov_b32 s30, 0')
    k('s_waitcnt lgkmcnt(0)')
    k(f's_cmp_eq_u32 s{SW}, 0\ns_cselect_b32 s8, s36, s38\ns_cselect_b32 s9, s37, s39\ns_and_b32 s9, s9, 0xffff\ns_mov_b32 s10, {1024*7168}\ns_mov_b32 s11, 0x00020000')
    k(LE + ':')
    k('s_mov_b32 s26, 0\ns_mov_b32 s31, s25')
    def dma(slot):
        r = [f's_add_u32 m0, s24, {slot*c.SB + j*1024}\ns_nop 0\nbuffer_load_dwordx4 v{vD+j}, s[8:11], s26 offen lds' for j in range(7)]
        r.append(f's_mov_b32 m0, s{31+slot}\ns_nop 0\nbuffer_load_dwordx4 v{vD+7}, s[8:11], s26 offen lds')
        return r
    c.dma = dma; c.adv = 's_add_u32 s26, s26, s27'
    c.vX = [233 + i for i in range(4)]; c.vW = [244 + i for i in range(4)]
    def late():
        if fuse: k(f's_load_dwordx4 s[36:39], s[0:1], {ARG_WD}')
        for sl in range(1, 4): k(f's_add_u32 s{31+sl}, s{30+sl}, s30')
        srd_off(k, 40, 4, WS_SS, 131072 * SSN // 16)
        k(f'v_and_b32 v237, 31, v{VL}\nv_lshlrev_b32 v237, 4, v237\nv_lshrrev_b32 v241, 5, v{VL}\nv_lshl_add_u32 v237, v241, 11, v237')
        k(f's_lshl_b32 s44, s17, 2\ns_add_u32 s44, s44, s{SW}\ns_lshl_b32 s44, s44, 13\ns_add_u32 s45, s44, 4096')
        k(f's_lshl_b32 s22, s{SW}, 12\nv_lshlrev_b32 v240, 4, v{VL}\nv_add_u32 v240, s22, v240')
        for sl in range(4): k(f'v_add_u32 v{c.vX[sl]}, {sl*c.SB}, v240')
        tr_lane_terms(k, VL, 240, 241, 242)
        k(f'v_and_b32 v243, 1, v240\nv_mul_u32_u24 v243, {UP}, v243\nv_lshrrev_b32 v240, 1, v240\nv_lshl_add_u32 v240, v240, 3, v241\nv_mul_u32_u24 v240, 224, v240')
        k('v_add_u32 v243, v243, v240\nv_lshl_add_u32 v243, v242, 3, v243')
        for sl in range(4): k(f'v_add_u32 v{c.vW[sl]}, {sl*c.SB + XB}, v243')
        k('s_waitcnt lgkmcnt(0)')
    c.late = late
    c.tailx = [f'buffer_load_dwordx4 {a_(72+mt*16+4*q, 4)}, v237, s[40:43], s{44+mt} offen offset:{q*512}' for mt in range(2) for q in range(4)]
    c.xoff = lambda mt, j: (mt * 2 + j) * 1024
    c.woff = lambda nt, j, hf: (j * 16 + hf * 4) * 224 + nt * 32
    c.swap = lambda nt: False
    c.RS, c.DS, c.BP, c.GA = 8, 0, 2, 4
    c.sCnt = 28
    t1_mainloop(k, c)
    wpre = down_pre(k, VL, SW) if fuse else []
    srd_off(k, 8, 4, WS_HH, 64*224*1024)
    k(f's_lshl_b32 s22, s17, 3\ns_lshl_b32 s23, s{SW}, 1\ns_add_u32 s22, s22, s23\ns_mul_i32 s22, s22, 224\ns_mul_i32 s23, s18, 7\ns_add_u32 s22, s22, s23\ns_lshl_b32 s22, s22, 10')
    k(f's_add_u32 s23, s22, {224*1024}')
    k(f'v_lshlrev_b32 v240, 4, v{VL}\nv_add_u32 v241, 0x1000, v240')
    for mt in range(2):
        for i in range(8): k(f'v_accvgpr_read_b32 v{225+i}, a{72+mt*SSN//2+i}')
        for i in range(8, SSN // 2): k(f'v_accvgpr_read_b32 v233, a{72+mt*SSN//2+i}\nv_add_f32 v{225+i%8}, v{225+i%8}, v233')
        for i in range(4): k(f'v_add_f32 v{225+i}, v{225+i}, v{229+i}')
        k('v_add_f32 v225, v225, v226\nv_add_f32 v227, v227, v228\nv_add_f32 v225, v225, v227')
        xhalf_add(k, 225, 226)
        k(f'v_mov_b32 v226, {f2u(1e-5)}\nv_fmac_f32 v226, {f2u(1/1024)}, v225\nv_rsq_f32 v227, v226\nv_sqrt_f32 v{246+4*mt}, v226\ns_nop 0\nv_mul_f32 v{244+4*mt}, {f2u(-LOG2E)}, v227')
    for nt in range(7):
        for mt in range(2):
            b = (nt * 2 + mt) * 16
            for i in range(0, 8, 2): k(f'v_pk_mul_f32 {v(b+i,2)}, {v(b+i,2)}, {v(244+4*mt,2)} op_sel_hi:[1,0]')
            for i in range(8): k(f'v_exp_f32 v{b+i}, v{b+i}')
            for i in range(0, 8, 2): k(f'v_pk_fma_f32 {v(b+i,2)}, {v(b+i,2)}, {v(246+4*mt,2)}, {v(246+4*mt,2)} op_sel_hi:[1,0,0]')
            if wpre: k(wpre.pop(0))
            for i in range(8): k(f'v_rcp_f32 v{b+i}, v{b+i}')
            if wpre: k(wpre.pop(0))
            for i in range(0, 8, 2): k(f'v_pk_mul_f32 {v(b+8+i,2)}, {v(b+i,2)}, {v(b+8+i,2)}')
            for i in range(4): k(f'v_cvt_pk_bf16_f32 v{b+i}, v{b+8+2*i}, v{b+9+2*i}')
            k(f'buffer_store_dwordx4 v[{b}:{b+3}], v{240 + nt//4}, s[8:11], s{22+mt} offen offset:{(nt%4)*1024}')
    if fuse: down_phase(k, VL, SW)
    stamp_end(k)
    return k
```

```python
import sys; sys.path.insert(0, 'gen')
from common import *
from ln import ln1_kernel
from t1 import gateup_kernel
from qkv import qkv_kernel
from t3 import t3_kernel as t2_kernel
from attn import attn_kernel
NAME = 'sequential_preLN__softmax_full_mha__glu_gated_glu__prompt'
hdr = ''.join(l for l in open(f'cdna_kernels/{NAME}.s.ref') if l.startswith(';') and '@launch' not in l and 'Override' not in l and 'grid=ceil' not in l)
ks = [qkv_kernel(), attn_kernel(), t2_kernel('proj_kernel', 64, WS_O, ARG_WO, False),
      gateup_kernel(), t2_kernel('down_kernel', 224, WS_HH, ARG_WD, True)]
FU = int(os.environ.get('FU', '2'))
if FU: ks[4 - FU:] = [gateup_kernel(FU)]
if os.environ.get('ONLY'): ks = [k for k in ks if k.name.split('_')[0] in os.environ['ONLY'].split(',')]
SF = os.environ.get('SF', 'sc1'); SK = os.environ.get('SK', 'qkv,attn,proj,gateup,mlp').split(',')
if SF != '0':
    for k in ks:
        if k.name.split('_')[0] in SK:
            k.l = [x + ' ' + SF.replace('_', ' ') if 'buffer_store_dwordx4' in x and ';x' not in x else x for x in k.l]
out = sys.argv[1] if len(sys.argv) > 1 else f'cdna_kernels/{NAME}.s'
open(out, 'w').write(build(ks, header=hdr))
```

```python
from common import *
class T1:
    pass
def t1_mainloop(k, c):
    KS = getattr(c, 'KS', 1)
    FS = (c.MT + c.NT) * 4 * KS
    fr = getattr(c, 'frag', a_); acc = getattr(c, 'acc', v)
    def xf(s_, ks, mt): return s_ * FS + ks * (c.MT + c.NT) * 4 + mt * 4
    def wf(s_, ks, nt): return s_ * FS + ks * (c.MT + c.NT) * 4 + c.MT * 4 + nt * 4
    c.xf = xf
    def reads(slot, j, s_):
        r = []
        for ks in range(KS):
            kt = j * KS + ks
            xs = [(xf(s_, ks, mt), f'ds_read_b128 {fr(xf(s_, ks, mt), 4)}, ' + (c.xaddr(slot, mt, kt) if hasattr(c, 'xaddr') else f'v{c.vX[slot]} offset:{c.xoff(mt, kt)}')) for mt in range(c.MT)]
            ws = [(wf(s_, ks, nt), f'ds_read_b64_tr_b16 {fr(wf(s_, ks, nt) + 2 * hf, 2)}, ' + (c.waddr(slot, nt, kt, hf) if hasattr(c, 'waddr') else f'v{c.vW[slot]} offset:{c.woff(nt, kt, hf)}')) for nt in range(c.NT) for hf in range(2)]
            if hasattr(c, 'wlast'): ws = ws[:-2] + [(wf(s_, ks, c.NT - 1), c.wlast(fr(wf(s_, ks, c.NT - 1), 4)))]
            if 'x' in os.environ.get('DX', '') and k.name.startswith('down'): xs = []
            if 'w' in os.environ.get('DX', '') and k.name.startswith('down'): ws = []
            r += xs[:1] + ws[:2] + xs[1:] + ws[2:]
            if hasattr(c, 'xreads'): r += c.xreads(s_, ks)
        return r
    def mfmas(s_, z=False):
        r = []
        for ks in range(KS):
            for nt in range(c.NT):
                for mt in range(c.MT):
                    sm = hasattr(c, 'wlast') and nt == c.NT - 1
                    d = acc((nt * c.MT + mt) * 16, 4 if sm else 16)
                    A, B = fr(wf(s_, ks, nt), 4), fr(xf(s_, ks, mt), 4)
                    if c.swap(nt): A, B = B, A
                    r.append(((wf(s_, ks, nt), xf(s_, ks, mt)), ('v_mfma_f32_16x16x32_bf16' if sm else 'v_mfma_f32_32x32x16_bf16') + f' {d}, {A}, {B}, ' + ('0' if z and ks == 0 else d)))
        return r
    q = []
    def need(tags):
        last = max([i for i, t in enumerate(q) if t in tags], default=-1)
        if last >= 0:
            n = len(q) - 1 - last
            n = min(n, 14)
            k(f's_waitcnt lgkmcnt({n})')
            del q[:len(q) - n]
    def run(mf, plan):
        for i, (tags, ins) in enumerate(mf):
            need(tags)
            k(ins)
            for t, x in plan[i]:
                if t == 'bar':
                    k(x); del q[:]
                elif isinstance(t, tuple):
                    need(t); k(x)
                else:
                    k(x)
                    if t is not None: q.append(t)
    def spread(plan, items, lo, hi):
        n = hi - lo
        for i in range(n): plan[lo + i] += items[i * len(items) // n:(i + 1) * len(items) // n]
    tailx = getattr(c, 'tailx', [])
    def stage(t, slot, dmaB, dmaA, wait):
        cnt = c.NSTAGES - c.NST
        add = len(tailx) if (t is not None and t > cnt) else 0
        d = [(None, x) for x in c.dma((slot - 1) % c.NST)[c.GA:]] if dmaB else []
        if d: d[-1] = (None, d[-1][1] + '\n' + c.adv)
        dA = [(None, x) for x in c.dma(slot)[:c.GA]] if dmaA else []
        if t == cnt + 1: d = [(None, x) for x in tailx]
        nd = max(1, c.SUB - 1)
        for j in range(c.SUB):
            s_ = j & 1
            mf = mfmas(s_, t == 0 and j == 0 and getattr(c, 'zero0', False)); n = len(mf)
            plan = [[] for _ in mf]
            if j < c.SUB - 1:
                spread(plan, reads(slot, j + 1, s_ ^ 1), 0, c.RS)
                spread(plan, d[j * len(d) // nd:(j + 1) * len(d) // nd], c.DS, n)
            elif wait is not None:
                plan[c.BP].append(('bar', 's_waitcnt lgkmcnt(0)\ns_barrier' if LD else f's_waitcnt vmcnt({int(wait * c.G) + add}) lgkmcnt(0)\ns_barrier'))
                spread(plan, reads((slot + 1) % c.NST, 0, s_ ^ 1), c.BP, min(n, c.BP + c.RS))
                spread(plan, dA, c.BP, n)
            if hasattr(c, 'extra'): spread(plan, c.extra(t, j, s_), c.XS, n)
            run(mf, plan)
    assert c.SUB % 2 == 0
    stamp(k, 1 + getattr(c, 'sb', 0))
    LD = getattr(c, 'loader', False)
    if LD:
        real_dma = c.dma; c.dma = lambda slot: []; c.adv = ''; c.GA = 0
    if hasattr(c, 'pro'): c.pro()
    else:
        for x in c.dma(0): k(x)
        k(c.adv)
        if hasattr(c, 'late'): c.late()
        pd = []
        for t in range(1, c.NST - 1):
            pd += c.dma(t) if not LD else ['']; pd[-1] += '\n' + c.adv
        pd += c.dma(c.NST - 1)[:c.GA]
        interleave(k, pd, [f'v_mov_b32 v{i}, 0' for i in range(0 if getattr(c, 'zero0', False) else c.MT * c.NT * 16)])
        if hasattr(c, 'late2'): c.late2()
        k('s_barrier' if LD else f's_waitcnt vmcnt({(c.NST - 2) * c.G + c.GA})\ns_barrier')
    stamp(k, 2 + getattr(c, 'sb', 0))
    for t_, x in reads(0, 0, 0): k(x); q.append(t_)
    if hasattr(c, 'atP0'): c.atP0()
    cnt = c.NSTAGES - c.NST
    peel = getattr(c, 'peel', [])
    for t, w in enumerate(peel): stage(t, t, True, True, w / c.G)
    iters = 0 if getattr(c, 'unroll', False) else (cnt - len(peel)) // c.NST
    if iters:
        L = k.label('loop')
        k(f's_mov_b32 s{c.sCnt}, {iters}')
        k(L + ':')
        q0 = list(q)
        for sl in range(c.NST): stage(None, sl, True, True, c.NST - 2)
        assert q == q0, (q, q0)
        k(f's_sub_u32 s{c.sCnt}, s{c.sCnt}, 1\ns_cmp_lg_u32 s{c.sCnt}, 0\ns_cbranch_scc1 {L}')
    stamp(k, 3 + getattr(c, 'sb', 0))
    for t in range(len(peel) + iters * c.NST, c.NSTAGES):
        stage(t, t % c.NST, t <= cnt, t < cnt, None if t == c.NSTAGES - 1 else min(c.NST - 2, c.NSTAGES - 2 - t))
    k('s_waitcnt vmcnt(0)\ns_nop 14')
    stamp(k, 4 + getattr(c, 'sb', 0))

def t1_loader(k, c, dma, adv, work=None):
    for t in range(c.NST):
        for x in dma(t): k(x)
        k(adv)
        if t == 0 and hasattr(c, 'llate'): c.llate()
    k(f's_waitcnt vmcnt({(c.NST - 1) * c.G})\ns_barrier')
    def step(slot, d, wait):
        rd, cp = work(slot) if work else ([], [])
        for x in rd: k(x)
        if d:
            dd = dma((slot - 1) % c.NST); dd[-1] += '\n' + adv
            h = len(dd) // 3
            for x in dd[:h]: k(x)
            if rd: k('s_waitcnt lgkmcnt(0)')
            interleave(k, dd[h:], cp)
        else:
            if rd: k('s_waitcnt lgkmcnt(0)')
            for x in cp: k(x)
        if wait is not None: k(f's_waitcnt vmcnt({wait * c.G})\ns_barrier')
    step(0, False, c.NST - 2)
    cnt = c.NSTAGES - c.NST
    iters = cnt // c.NST
    if iters:
        L = k.label('lloop')
        k(f's_mov_b32 s{c.sCnt}, {iters}\n{L}:')
        for i in range(c.NST): step((1 + i) % c.NST, True, c.NST - 2)
        k(f's_sub_u32 s{c.sCnt}, s{c.sCnt}, 1\ns_cmp_lg_u32 s{c.sCnt}, 0\ns_cbranch_scc1 {L}')
    for t in range(1 + iters * c.NST, c.NSTAGES):
        step(t % c.NST, t <= cnt, None if t == c.NSTAGES - 1 else min(c.NST - 2, c.NSTAGES - 2 - t))

def t1_worker(k, c, work):
    assert c.NST % 2 == 0
    k('s_barrier')
    def step(slot, first, bar):
        for x in work(slot, slot & 1)[0]: k(x)
        if not first:
            for x in work((slot - 1) % c.NST, (slot & 1) ^ 1)[1]: k(x)
        k('s_waitcnt lgkmcnt(0)')
        if bar: k('s_barrier')
    step(0, True, True)
    iters = (c.NSTAGES - 2) // c.NST
    L = k.label('wloop')
    k(f's_mov_b32 s{c.sCnt}, {iters}\n{L}:')
    for i in range(c.NST): step((1 + i) % c.NST, False, True)
    k(f's_sub_u32 s{c.sCnt}, s{c.sCnt}, 1\ns_cmp_lg_u32 s{c.sCnt}, 0\ns_cbranch_scc1 {L}')
    for t in range(1 + iters * c.NST, c.NSTAGES): step(t % c.NST, False, t < c.NSTAGES - 1)
    for x in work((c.NSTAGES - 1) % c.NST, (c.NSTAGES - 1) & 1)[1]: k(x)

def lane_setup(k, vl, sw):
    k(f'v_lshrrev_b32 v{vl}, 6, v0\ns_nop 0\nv_readfirstlane_b32 s{sw}, v{vl}\nv_and_b32 v{vl}, 63, v0')

def tr_lane_terms(k, vl, vg, vr, vc):
    k(f'v_lshrrev_b32 v{vg}, 4, v{vl}\nv_bfe_u32 v{vr}, v{vl}, 2, 2')
    k(f'v_and_b32 v{vc}, 1, v{vl}\nv_lshlrev_b32 v{vc}, 1, v{vc}\nv_bfe_u32 v{vc+1}, v{vl}, 1, 1\nv_or_b32 v{vc}, v{vc}, v{vc+1}')

def poll(k, va, soff, full):
    P, D = k.label('poll'), k.label('rdy')
    k(f's_mov_b32 s50, 0x40000\n{P}:\nbuffer_load_dword v251, v{va}, s[52:55], {soff} offen sc1\ns_waitcnt vmcnt(0)\nv_cmp_eq_u32 vcc, 0, v251')
    k(f's_and_b64 exec, exec, vcc\ns_cbranch_scc0 {D}\ns_sub_u32 s50, s50, 1\ns_cmp_lg_u32 s50, 0\ns_cbranch_scc1 {P}\n{D}:\ns_mov_b64 exec, -1')

DNST = int(os.environ.get('DN', 5)); vWd = 252
def down_w(slot):
    return [f's_add_u32 m0, s25, {slot*32768 + (b&1)*1024 + (b>>1)*8192}\ns_nop 0\nbuffer_load_dwordx4 v{vWd+b}, s[12:15], s27 offen lds' for b in range(4)]
AS = 104
def down_setup(k, VL, SW):
    T, VE = 238, 248
    def save(i, r): k(f'v_accvgpr_write_b32 a{AS+i}, v{r}')
    k('s_bfe_u32 s19, s2, 0x10002\ns_and_b32 s48, s2, 1\ns_lshl_b32 s48, s48, 3\ns_bfe_u32 s49, s2, 0x30003\ns_add_u32 s48, s48, s49')
    k('s_bfe_u32 s49, s2, 0x10001\ns_lshl_b32 s49, s49, 2\ns_lshr_b32 s20, s2, 6\ns_add_u32 s49, s49, s20')
    k(f'v_lshrrev_b32 v{T}, 3, v{VL}\nv_and_b32 v{T+1}, 7, v{VL}\nv_bfe_u32 v{T+2}, v{VL}, 4, 1\nv_lshlrev_b32 v{T+2}, 2, v{T+2}\nv_xor_b32 v{T+1}, v{T+1}, v{T+2}')
    k(f'v_lshlrev_b32 v{T}, 11, v{T}\nv_lshl_add_u32 v{T}, v{T+1}, 4, v{T}\ns_lshl_b32 s22, s{SW}, 15\ns_lshl_b32 s23, s49, 8\ns_add_u32 s22, s22, s23\ns_mul_i32 s23, s19, {1792*2048}\ns_add_u32 s22, s22, s23')
    k(f'v_add_u32 v{vWd}, s22, v{T}\nv_add_u32 v{vWd+1}, 0x4000, v{vWd}\nv_add_u32 v{vWd+2}, 128, v{vWd}\nv_add_u32 v{vWd+3}, 128, v{vWd+1}')
    srd(k, 12, 36, 3584 * 2048)
    if k.fuse < 2: srd_off(k, 52, 4, WS_FL, 262144)
    k(f's_lshl_b32 s46, s17, 2\ns_add_u32 s46, s46, s{SW}\ns_lshl_b32 s46, s46, 1\ns_lshr_b32 s47, s18, 4\ns_add_u32 s46, s46, s47\ns_lshl_b32 s46, s46, 10\ns_and_b32 s47, s18, 15\ns_lshl_b32 s47, s47, 2\ns_add_u32 s46, s46, s47')
    k(f's_and_b32 s20, s{SW}, 1\ns_lshr_b32 s21, s{SW}, 1')
    k('s_lshl_b32 s47, s48, 1\ns_add_u32 s47, s47, s21\ns_lshl_b32 s47, s47, 1\ns_add_u32 s47, s47, s19\ns_lshl_b32 s47, s47, 3\ns_add_u32 s47, s47, s49\ns_lshl_b32 s47, s47, 7')
    k(f's_lshl_b32 s35, s48, 2\ns_add_u32 s35, s35, s{SW}\ns_mul_i32 s22, s35, {224*1024}\ns_mul_i32 s23, s19, {112*1024}\ns_add_u32 s22, s22, s23\nv_lshlrev_b32 v{VE}, 4, v{VL}\nv_add_u32 v{T}, s22, v{VE}')
    save(0, T)
    k(f's_lshl_b32 s22, s21, 13\nv_add_u32 v{T}, s22, v{VE}'); save(1, T)
    tr_lane_terms(k, VL, T, T+1, T+2)
    k(f'v_and_b32 v{T+3}, 1, v{T}\nv_lshlrev_b32 v{T+3}, 1, v{T+3}\ns_lshl_b32 s22, s19, 2\nv_add_u32 v{T+3}, s22, v{T+3}')
    k(f'v_lshrrev_b32 v{T+4}, 1, v{T+2}\nv_add_u32 v{T+3}, v{T+3}, v{T+4}\nv_lshrrev_b32 v{T+4}, 1, v{T+1}\nv_lshlrev_b32 v{T+4}, 2, v{T+4}\nv_xor_b32 v{T+3}, v{T+3}, v{T+4}')
    k(f'v_lshlrev_b32 v{T+3}, 4, v{T+3}\nv_and_b32 v{T+4}, 1, v{T+2}\nv_lshl_add_u32 v{T+3}, v{T+4}, 3, v{T+3}\nv_lshl_add_u32 v{T+3}, v{T+1}, 7, v{T+3}')
    k(f'v_lshrrev_b32 v{T+4}, 1, v{T}\nv_lshl_add_u32 v{T+3}, v{T+4}, 10, v{T+3}\ns_lshl_b32 s22, s20, 13\nv_add_u32 v{T+3}, s22, v{T+3}')
    save(2, T + 3)
    k('s_lshl_b32 s35, s48, 2\ns_lshl_b32 s22, s21, 1\ns_add_u32 s35, s35, s22\ns_lshl_b32 s22, s35, 16')
    k('s_lshl_b32 s23, s49, 1\ns_add_u32 s23, s23, s20\ns_lshl_b32 s23, s23, 1\ns_add_u32 s23, s23, s19\ns_lshl_b32 s29, s23, 6\ns_add_u32 s29, s29, s22')
    k(f'v_and_b32 v{T}, 31, v{VL}\nv_lshlrev_b32 v{T}, 11, v{T}\nv_lshrrev_b32 v{T+1}, 5, v{VL}\nv_lshl_add_u32 v{T}, v{T+1}, 4, v{T}\nv_add_u32 v{T}, s29, v{T}')
    save(3, T)
    k(f's_lshl_b32 s29, s23, 11\ns_add_u32 s58, s29, s22\ns_add_u32 s59, s58, 0x10000')
    k(f's_lshl_b32 s56, s2, 2\ns_add_u32 s56, s56, s{SW}\ns_lshl_b32 s56, s56, 12\ns_xor_b32 s57, s56, {4 << 14}')
def down_pre(k, SW):
    k(f's_lshl_b32 s25, s{SW}, 11\ns_add_u32 s25, s25, 16384\ns_mov_b32 s27, 0\ns_mov_b32 s20, s25\ns_mov_b32 s21, 8192\ns_mov_b32 s29, 128\ns_barrier')
    return [f's_mov_b32 m0, s20\ns_nop 0\nbuffer_load_dwordx4 v{vWd}, s[12:15], s27 offen lds',
            f's_add_u32 m0, s20, 1024\ns_add_u32 s20, s20, s21\nbuffer_load_dwordx4 v{vWd+1}, s[12:15], s27 offen lds\ns_add_u32 s27, s27, s29\ns_xor_b32 s21, s21, {8192 ^ 24576}\ns_xor_b32 s29, s29, {128 ^ (131072 - 128)}']

def down_phase(k, VL, SW):
    assert DNST == 5
    c = T1(); c.SUB, c.NST, c.NSTAGES, c.MT, c.NT, c.KS, c.G = 2, DNST, 28, 2, 2, 2, 8
    c.SB = 32768; XB = 16384; c.sb = 100 if os.environ.get('PS') else 5; c.sCnt = 28; c.zero0 = True
    k.lds = max(k.lds, c.SB * c.NST)
    FR, RES, XC, vXd, VN, VE, VF, vX, vW, T = 64, 128, 144, 176, 181, 225, 187, 190, 194, 240
    k(f'v_lshlrev_b32 v{VF}, 7, v{VL}\nv_mov_b32 v250, 1')
    k(f'v_accvgpr_read_b32 v{vXd}, a{AS}\nv_accvgpr_read_b32 v{vX}, a{AS+1}\nv_accvgpr_read_b32 v{vW}, a{AS+2}\nv_accvgpr_read_b32 v{VN}, a{AS+3}')
    k(f's_lshl_b32 s24, s{SW}, 12\ns_mov_b32 s26, 0\nv_xor_b32 v{vW+1}, 64, v{vW}\nv_add_u32 v{VN+1}, 0x10000, v{VN}')
    for i in (1, 2): k(f'v_add_u32 v{vX+i}, {i*65536}, v{vX}\nv_add_u32 v{vW+2*i}, {i*65536}, v{vW}\nv_add_u32 v{vW+2*i+1}, {i*65536}, v{vW+1}')
    if k.fuse < 2: srd_off(k, 40, 4, WS_H, 4 * MB)
    else:
        srd_off(k, 40, 4, WS_HN, 21 * MB)
        k(f'v_and_b32 v189, 31, v{VL}\nv_lshlrev_b32 v189, 2, v189\ns_lshr_b32 s7, s58, 16\ns_lshl_b32 s7, s7, 7\ns_add_u32 s7, s7, {WS_MEANX + 8192 - WS_HN}')
    stamp(k, 13)
    k('s_waitcnt vmcnt(0)')
    stamp(k, 11)
    if os.environ.get('RT'): k('s_memrealtime s[62:63]')
    k(f'v_lshlrev_b32 v{VF+1}, 2, v{VL}\ns_mov_b64 exec, 0xff\nbuffer_store_dword v250, v{VF}, s[52:55], s46 offen sc1')
    c.xaddr = lambda sl, mt, kt: f'v{vX + sl//2} offset:{(sl&1)*c.SB + (mt*4 + kt)*1024}'
    c.waddr = lambda sl, nt, kt, hf: f'v{vW + sl//2*2 + nt} offset:{(sl&1)*c.SB + XB + kt*2048 + hf*512}'
    def dx(slot): return [(f's_add_u32 m0, s24, {slot*c.SB}\ns_nop 0\n' if j == 0 else '') + f'buffer_load_dwordx4 v{vXd}, s[8:11], s26 offen offset:{j*1024} lds' for j in range(4)]
    def pro():
        k('s_mov_b64 exec, 0xffff')
        poll(k, VF + 1, 's47', '0xffff')
        stamp(k, 5)
        if os.environ.get('RT'): k('s_memrealtime s[64:65]\ns_waitcnt lgkmcnt(0)')
        for t in range(c.NST):
            for x in dx(t): k(x)
            if t < c.NST - 1: k('s_add_u32 s26, s26, 4096')
        k(f's_waitcnt vmcnt({(c.NST - 1) * 4})\ns_barrier')
    c.peel = [min((c.NST - 3 - t) * 4 + (t + 1) * 8, (c.NST - 2) * 8) for t in range(c.NST)]
    c.pro = pro
    c.dma = lambda slot: dx(slot) + down_w(slot); c.adv = f's_add_u32 s26, s26, 4096\ns_add_u32 s27, s27, {64*2048}'
    c.tailx = [f'buffer_load_dwordx4 {v(RES+8*mt+4*q, 4)}, v{VE}, s[40:43], s{58+mt} offen offset:{q*1024}' for mt in range(2) for q in range(2)]
    if k.fuse == 2: c.tailx += [f'buffer_load_dword v{178+2*mt}, v189, s[40:43], s7 offen offset:{mt*128}' for mt in range(2)]
    c.frag = lambda i, n: v(FR + i, n)
    c.swap = lambda nt: False
    c.RS, c.DS, c.BP, c.GA = [int(x) for x in os.environ.get('DP', '5,0,0,4').split(',')]
    t1_mainloop(k, c)
    srd_off(k, 8, 4, WS_XC, 4 * MB); srd(k, 44, 38, 4 * MB)
    for i in range(4):
        for j in range(4): k(f'v_cvt_pk_bf16_f32 v{FR+4*i+j}, v{32+8*i+2*j}, v{33+8*i+2*j}')
        k(f'buffer_store_dwordx4 {v(FR+4*i, 4)}, v{VE}, s[8:11], s56 offen offset:{i*1024} sc1 ;x')
    def addbf(src):
        for q in range(16):
            k(f'v_lshlrev_b32 v{T+2}, 16, v{src+q}\nv_and_b32 v{T+3}, 0xffff0000, v{src+q}\nv_pk_add_f32 {v(2*q,2)}, {v(2*q,2)}, {v(T+2,2)}')
    addbf(RES)
    if k.fuse == 2:
        for i in range(0, 32, 2): k(f'v_pk_add_f32 {v(i,2)}, {v(i,2)}, {v(178+i//16*2,2)} op_sel_hi:[1,0]')
    if 'w' in os.environ.get('MX', ''): k('s_waitcnt vmcnt(0)')
    stamp(k, 12)
    P, D = k.label('poll'), k.label('rdy')
    k(f's_mov_b32 s50, 0x40000\n{P}:')
    for i in range(4): k(f'buffer_load_dwordx4 {v(XC+4*i, 4)}, v{VE}, s[8:11], s57 offen offset:{i*1024} sc1')
    k(f's_waitcnt vmcnt(0)\nv_max_u32 v{T}, v{XC}, v{XC+1}')
    for i in range(2, 16, 2): k(f'v_max3_u32 v{T}, v{T}, v{XC+i}, v{XC+i+1}')
    k(f'v_cmp_eq_u32 vcc, -1, v{T}\ns_cbranch_vccz {D}\ns_sub_u32 s50, s50, 1\ns_cmp_lg_u32 s50, 0\ns_cbranch_scc1 {P}\n{D}:')
    stamp(k, 10)
    addbf(XC)
    for i in range(16): k(f'v_cvt_pk_bf16_f32 v{RES+i}, v{2*i}, v{2*i+1}')
    for i in range(4): k(f'buffer_store_dwordx4 {v(RES+4*i, 4)}, v{VN+i//2}, s[44:47], 0 offen offset:{(i%2)*32} ;x')

def proj_phase(k, VL, SW):
    c = T1(); c.SUB, c.NST, c.NSTAGES, c.MT, c.NT, c.KS, c.G = 2, 6, 16, 2, 2, 2, 6
    c.SB = 24576; XB = 16384; WBL = c.SB * c.NST; c.sCnt = 28; c.zero0 = True; c.unroll = True; c.sb = 0 if os.environ.get('PS') else 100
    FR, RES, vXd, vWp, VN, VP, MX, VB, vX, vW, T = 64, 128, 144, 145, 148, 150, 152, 155, 156, 160, 170
    k('s_and_b32 s17, s2, 3\ns_lshl_b32 s17, s17, 2\ns_bfe_u32 s18, s2, 0x20003\ns_add_u32 s17, s17, s18')
    k('s_bfe_u32 s18, s2, 0x10002\ns_lshl_b32 s18, s18, 3\ns_lshr_b32 s19, s2, 5\ns_add_u32 s18, s18, s19')
    k(f's_lshl_b32 s30, s17, 2\ns_add_u32 s30, s30, s{SW}\ns_lshl_b32 s22, s30, 16\nv_lshlrev_b32 v{VB}, 4, v{VL}\nv_add_u32 v{vXd}, s22, v{VB}')
    k(f'v_lshrrev_b32 v{T}, 3, v{VL}\nv_and_b32 v{T+1}, 7, v{VL}\nv_bfe_u32 v{T+2}, v{VL}, 4, 1\nv_lshlrev_b32 v{T+2}, 2, v{T+2}\nv_xor_b32 v{T+1}, v{T+1}, v{T+2}')
    k(f'v_lshlrev_b32 v{T}, 11, v{T}\nv_lshl_add_u32 v{T}, v{T+1}, 4, v{T}\ns_lshl_b32 s22, s{SW}, 15\ns_lshl_b32 s23, s18, 7\ns_add_u32 s22, s22, s23')
    k(f'v_add_u32 v{vWp}, s22, v{T}\nv_add_u32 v{vWp+1}, 0x4000, v{vWp}')
    k(f's_lshl_b32 s24, s{SW}, 12\ns_lshl_b32 s25, s{SW}, 11\ns_add_u32 s25, s25, {XB}\ns_mov_b32 s26, 0\ns_mov_b32 s27, 0')
    k(f's_and_b32 s20, s{SW}, 1\ns_lshr_b32 s21, s{SW}, 1\ns_lshl_b32 s22, s20, 10\ns_add_u32 m0, s22, {WBL}\ns_add_u32 s22, s22, {WS_WBAR - WS_MEANX}')
    k('s_waitcnt lgkmcnt(0)')
    srd_off(k, 48, 4, WS_MEANX, 65536 + 2048 * 4 * SSN); srd_off(k, 8, 4, WS_O, 4 * MB); srd(k, 12, 6, 2 * MB)
    k(f'buffer_load_dwordx4 v{VB}, s[48:51], s22 offen lds')
    def dma(slot):
        x = [(f's_add_u32 m0, s24, {slot*c.SB}\ns_nop 0\n' if j in (0, c.GA - 2) else '') + f'buffer_load_dwordx4 v{vXd}, s[8:11], s26 offen offset:{j*1024} lds' for j in range(4)]
        return [f's_add_u32 m0, s25, {slot*c.SB + b*1024}\ns_nop 0\nbuffer_load_dwordx4 v{vWp+b}, s[12:15], s27 offen lds' for b in range(2)] + x
    c.dma = dma; c.adv = f's_add_u32 s26, s26, 4096\ns_add_u32 s27, s27, {64*2048}'
    def late2():
        k(f's_lshl_b32 s22, s21, 13\nv_add_u32 v{vX}, s22, v{VB}')
        k('s_lshl_b32 s30, s17, 2\ns_lshl_b32 s22, s21, 1\ns_add_u32 s30, s30, s22')
        k(f's_lshl_b32 s22, s30, 16\ns_lshl_b32 s23, s18, 1\ns_add_u32 s23, s23, s20\ns_lshl_b32 s29, s23, 6\ns_add_u32 s29, s29, s22')
        k(f'v_and_b32 v{MX+2}, 31, v{VL}\nv_lshlrev_b32 v{T}, 11, v{MX+2}\nv_lshrrev_b32 v{T+1}, 5, v{VL}\nv_lshl_add_u32 v{T}, v{T+1}, 4, v{T}\nv_add_u32 v{VN}, s29, v{T}\nv_add_u32 v{VN+1}, 0x10000, v{VN}')
        k(f's_lshl_b32 s29, s23, 11\ns_add_u32 s29, s29, s22\nv_add_u32 v{VP}, s29, v{VB}\nv_add_u32 v{VP+1}, 0x10000, v{VP}')
        k(f's_lshl_b32 s22, s{SW}, 9\ns_add_u32 s22, s22, {WBL + 2048}\nv_lshl_add_u32 v{T}, v{VL}, 3, s22\nv_mov_b32 v{T+2}, 0\nv_mov_b32 v{T+3}, 0\nds_write_b64 v{T}, {v(T+2, 2)}')
        k(f'v_lshrrev_b32 v{T}, 2, v{VL}\nv_xor_b32 v{T}, v{T}, v{VL}\nv_bfe_u32 v{T}, v{T}, 2, 1\nv_lshl_add_u32 v{T+1}, v{T}, 7, v{T+1}')
        k(f'v_lshlrev_b32 v{VB}, 4, v{T+1}\nv_add_u32 v{VB}, {WBL}, v{VB}\nv_lshlrev_b32 v{MX+2}, 2, v{MX+2}\ns_lshl_b32 s31, s30, 7')
        tr_lane_terms(k, VL, T, T+1, T+2)
        k(f'v_and_b32 v{T+3}, 1, v{T}\nv_lshlrev_b32 v{T+3}, 1, v{T+3}\ns_lshl_b32 s22, s20, 2\nv_add_u32 v{T+3}, s22, v{T+3}')
        k(f'v_lshrrev_b32 v{T+4}, 1, v{T+2}\nv_add_u32 v{T+3}, v{T+3}, v{T+4}\nv_lshrrev_b32 v{T+4}, 1, v{T+1}\nv_lshlrev_b32 v{T+4}, 2, v{T+4}\nv_xor_b32 v{T+3}, v{T+3}, v{T+4}')
        k(f'v_lshlrev_b32 v{T+3}, 4, v{T+3}\nv_and_b32 v{T+4}, 1, v{T+2}\nv_lshl_add_u32 v{T+3}, v{T+4}, 3, v{T+3}\nv_lshl_add_u32 v{T+3}, v{T+1}, 7, v{T+3}')
        k(f'v_lshrrev_b32 v{T+4}, 1, v{T}\nv_lshl_add_u32 v{vW}, v{T+4}, 10, v{T+3}')
        for i in (1, 2): k(f'v_add_u32 v{vX+i}, {2*i*c.SB}, v{vX}\nv_add_u32 v{vW+i}, {2*i*c.SB}, v{vW}')
        srd_off(k, 40, 4, WS_HN, 4 * MB); srd(k, 44, 34, 4 * MB)
        k('s_waitcnt lgkmcnt(0)')
    c.late2 = late2
    c.xaddr = lambda sl, mt, kt: f'v{vX + sl//2} offset:{(sl&1)*c.SB + (mt*4 + kt)*1024}'
    c.waddr = lambda sl, nt, kt, hf: f'v{vW + sl//2} offset:{(sl&1)*c.SB + XB + kt*2048 + hf*512}'
    c.wk = -1
    def wlast(r): c.wk += 1; return f'ds_read_b128 {r}, v{VB} offset:{c.wk*32}'
    c.wlast = wlast
    c.tailx = [f'buffer_load_dwordx4 {v(RES+8*mt+4*q, 4)}, v{VN+mt}, s[44:47], 0 offen offset:{q*32}' for mt in range(2) for q in range(2)]
    c.tailx += [f'buffer_load_dword v{MX+mt}, v{MX+2}, s[48:51], s31 offen offset:{mt*128}' for mt in range(2)]
    c.frag = lambda i, n: v(FR + i, n)
    c.swap = lambda nt: False
    c.RS, c.DS, c.BP, c.GA = [int(x) for x in os.environ.get('PP', '6,1,1,4').split(',')]
    t1_mainloop(k, c)
    assert c.wk == 63
    for q in range(16):
        k(f'v_lshlrev_b32 v{T+2}, 16, v{RES+q}\nv_and_b32 v{T+3}, 0xffff0000, v{RES+q}\nv_pk_add_f32 {v(2*q,2)}, {v(2*q,2)}, {v(T+2,2)}')
    NM = k.label('nomu')
    k(f'v_add_f32 v32, v32, v{MX}\nv_add_f32 v48, v48, v{MX+1}\ns_add_u32 s31, s31, 8192\ns_cmp_lg_u32 s23, 0\ns_cbranch_scc1 {NM}')
    for mt in range(2): k(f'buffer_store_dword v{32+16*mt}, v{MX+2}, s[48:51], s31 offen offset:{mt*128} sc1')
    k(NM + ':')
    for mt in range(2):
        for i in range(0, 16, 2): k(f'v_pk_add_f32 {v(16*mt+i,2)}, {v(16*mt+i,2)}, {v(32+16*mt,2)} op_sel_hi:[1,0] neg_lo:[0,1] neg_hi:[0,1]')
        for i in range(8): k(f'v_cvt_pk_bf16_f32 v{FR+8*mt+i}, v{16*mt+2*i}, v{16*mt+2*i+1}')
        for q in range(2): k(f'buffer_store_dwordx4 {v(FR+8*mt+4*q, 4)}, v{VP+mt}, s[40:43], 0 offen offset:{q*1024}')
    k('v_pk_mul_f32 v[32:33], v[0:1], v[0:1]\nv_pk_mul_f32 v[34:35], v[16:17], v[16:17]')
    for i in range(2, 16, 2): k(f'v_pk_fma_f32 v[32:33], {v(i,2)}, {v(i,2)}, v[32:33]\nv_pk_fma_f32 v[34:35], {v(16+i,2)}, {v(16+i,2)}, v[34:35]')
    k('v_add_f32 v32, v32, v33\nv_add_f32 v33, v34, v35')
    xhalf_add(k, 32, 34); xhalf_add(k, 33, 34)
    k(f'v_lshlrev_b32 v{MX+2}, 2, v{MX+2}\ns_lshr_b32 s22, s23, 2\ns_lshl_b32 s22, s22, 9\ns_and_b32 s23, s23, 3\ns_lshl_b32 s23, s23, 2\ns_add_u32 s23, s23, s22\ns_lshl_b32 s22, s30, 12\ns_add_u32 s22, s22, s23\ns_add_u32 s22, s22, {WS_SS - WS_MEANX}\ns_add_u32 s23, s22, 4096\ns_mov_b32 exec_hi, 0')
    for mt in range(2): k(f'buffer_store_dword v{32+mt}, v{MX+2}, s[48:51], s{22+mt} offen sc1')
    k('s_mov_b32 exec_hi, -1\ns_lshl_b32 s51, s17, 12\ns_lshl_b32 s22, s18, 2\ns_add_u32 s51, s51, s22\ns_add_u32 s51, s51, 65536')

def gateup_kernel(fuse=False):
    c = T1(); c.SUB, c.NST, c.NSTAGES, c.MT, c.NT, c.G = 2, 4, 32, 2, 7, 8
    XB = 16384; UP = 7168 + 128; c.SB = 30976; DUMMY = c.SB * c.NST
    k = K('mlp_kernel' if fuse else 'gateup_kernel', 256, 256, DUMMY + 1024, vgpr=256 + 72 + SSN, sgpr=60, accum=256)
    k.fuse = fuse
    if os.environ.get('PS'): c.sb = 100
    guard(k, 256)
    stamp(k, 0)
    if os.environ.get('RT'): k('s_memrealtime s[60:61]')
    k(f's_load_dwordx2 s[4:5], s[0:1], {ARG_WS}\ns_load_dwordx4 s[36:39], s[0:1], {ARG_WG}')
    VL = 224; SW = 16
    if fuse == 2: k(f's_load_dwordx2 s[6:7], s[0:1], {ARG_WO}\ns_load_dwordx2 s[34:35], s[0:1], {ARG_X}')
    lane_setup(k, VL, SW)
    if fuse == 2: proj_phase(k, VL, SW)
    k('s_and_b32 s17, s2, 1\ns_lshl_b32 s17, s17, 2\ns_bfe_u32 s18, s2, 0x20003\ns_add_u32 s17, s17, s18')
    k('s_bfe_u32 s18, s2, 0x20001\ns_lshl_b32 s18, s18, 3\ns_lshr_b32 s19, s2, 5\ns_add_u32 s18, s18, s19')
    vD = 225
    LW, LE = k.label('w'), k.label('e')
    k(f's_cmp_lt_u32 s{SW}, 2\ns_cbranch_scc1 {LW}')
    k(f's_sub_u32 s22, s{SW}, 2\ns_lshl_b32 s24, s22, 13\ns_lshl_b32 s22, s22, 2\ns_lshl_b32 s23, s17, 3\ns_add_u32 s22, s22, s23\ns_lshl_b32 s22, s22, 16')
    k(f'v_lshlrev_b32 v240, 4, v{VL}\nv_add_u32 v240, s22, v240')
    for i in range(8): k(f'v_add_u32 v{vD+i}, {(i>>1)*65536 + (i&1)*1024}, v240')
    k(f's_mov_b32 s27, 2048\ns_add_u32 s25, s24, {7*1024}\ns_mov_b32 s30, {c.SB}')
    k('s_waitcnt lgkmcnt(0)')
    srd_off(k, 8, 4, WS_HN, 4*MB)
    k(f's_branch {LE}')
    k(LW + ':')
    k(f's_mul_i32 s24, s{SW}, {UP}\ns_add_u32 s24, s24, {XB}\ns_mul_i32 s22, s18, 224')
    for i in range(7):
        k(f'v_add_u32 v240, {i*64}, v{VL}\nv_mul_u32_u24 v241, 4682, v240\nv_lshrrev_b32 v241, 16, v241\nv_mul_u32_u24 v241, {7168-224}, v241\nv_lshl_add_u32 v241, v240, 4, v241\nv_add_u32 v{vD+i}, s22, v241')
    k(f'v_mov_b32 v{vD+7}, 0x7f000000\ns_mov_b32 s27, {32*7168}\ns_mov_b32 s25, {DUMMY}\ns_mov_b32 s30, 0')
    k('s_waitcnt lgkmcnt(0)')
    k(f's_cmp_eq_u32 s{SW}, 0\ns_cselect_b32 s8, s36, s38\ns_cselect_b32 s9, s37, s39\ns_and_b32 s9, s9, 0xffff\ns_mov_b32 s10, {1024*7168}\ns_mov_b32 s11, 0x00020000')
    k(LE + ':')
    k('s_mov_b32 s26, 0\ns_mov_b32 s31, s25')
    def dma(slot):
        r = [f's_add_u32 m0, s24, {slot*c.SB + j*1024}\ns_nop 0\nbuffer_load_dwordx4 v{vD+j}, s[8:11], s26 offen lds' for j in range(7)]
        r.append(f's_mov_b32 m0, s{31+slot}\ns_nop 0\nbuffer_load_dwordx4 v{vD+7}, s[8:11], s26 offen lds')
        return r
    c.dma = dma; c.adv = 's_add_u32 s26, s26, s27'
    c.vX = [233 + i for i in range(4)]; c.vW = [244 + i for i in range(4)]
    def late():
        if fuse: k(f's_load_dwordx4 s[36:39], s[0:1], {ARG_WD}')
        for sl in range(1, 4): k(f's_add_u32 s{31+sl}, s{30+sl}, s30')
        srd_off(k, 40, 4, WS_SS, 131072 * SSN // 16)
        k(f'v_and_b32 v237, 31, v{VL}\nv_lshlrev_b32 v237, 4, v237\nv_lshrrev_b32 v241, 5, v{VL}\nv_lshl_add_u32 v237, v241, 11, v237')
        k(f's_lshl_b32 s44, s17, 2\ns_add_u32 s44, s44, s{SW}\ns_lshl_b32 s44, s44, 13\ns_add_u32 s45, s44, 4096')
        k(f's_lshl_b32 s22, s{SW}, 12\nv_lshlrev_b32 v240, 4, v{VL}\nv_add_u32 v240, s22, v240')
        for sl in range(4): k(f'v_add_u32 v{c.vX[sl]}, {sl*c.SB}, v240')
        tr_lane_terms(k, VL, 240, 241, 242)
        k(f'v_and_b32 v243, 1, v240\nv_mul_u32_u24 v243, {UP}, v243\nv_lshrrev_b32 v240, 1, v240\nv_lshl_add_u32 v240, v240, 3, v241\nv_mul_u32_u24 v240, 224, v240')
        k('v_add_u32 v243, v243, v240\nv_lshl_add_u32 v243, v242, 3, v243')
        for sl in range(4): k(f'v_add_u32 v{c.vW[sl]}, {sl*c.SB + XB}, v243')
        k('s_waitcnt lgkmcnt(0)')
    c.late = late
    if fuse: c.late2 = lambda: down_setup(k, VL, SW); k.vgpr += 8
    def pro():
        srd_off(k, 52, 4, WS_FL, 262144)
        A, B = k.label('nf'), k.label('np')
        k(f'v_lshlrev_b32 v0, 7, v{VL}\nv_lshlrev_b32 v1, 2, v{VL}\nv_mov_b32 v2, 1\ns_lshl_b32 s22, s17, 1\ns_add_u32 s22, s22, s{SW}\ns_add_u32 s22, s22, 14\ns_lshl_b32 s22, s22, 5\ns_add_u32 s22, s22, s18\ns_lshl_b32 s6, s22, 7')
        if os.environ.get('PS'): stamp(k, 6)
        k(f's_waitcnt vmcnt(0)\ns_barrier\ns_cmp_lg_u32 s{SW}, 0\ns_cbranch_scc1 {A}\ns_mov_b32 exec_hi, 0\nbuffer_store_dword v2, v0, s[52:55], s51 offen sc1\ns_mov_b32 exec_hi, -1\n{A}:')
        if os.environ.get('PS'): stamp(k, 7)
        late(); c.late2()
        if os.environ.get('PS'): stamp(k, 8)
        k(f's_cmp_lt_u32 s{SW}, 2\ns_cbranch_scc1 {B}\ns_mov_b64 exec, 0xffff')
        poll(k, 1, 's6', '0xffff')
        k(B + ':')
        for t in range(3):
            for x in dma(t): k(x)
            k(c.adv)
        for x in dma(3)[:4]: k(x)
        k('s_waitcnt vmcnt(20)\ns_barrier')
        if os.environ.get('PS'): stamp(k, 9)
    if fuse == 2: c.pro = pro
    c.tailx = [f'buffer_load_dwordx4 {a_(72+mt*16+4*q, 4)}, v237, s[40:43], s{44+mt} offen offset:{q*512}' for mt in range(2) for q in range(4)]
    c.xoff = lambda mt, j: (mt * 2 + j) * 1024
    c.woff = lambda nt, j, hf: (j * 16 + hf * 4) * 224 + nt * 32
    c.swap = lambda nt: False
    c.RS, c.DS, c.BP, c.GA = 8, 0, 2, 4
    if os.environ.get('GZ', '1') == '1': c.zero0 = True; c.peel = [16] * 4
    c.sCnt = 28
    t1_mainloop(k, c)
    wpre = down_pre(k, SW) if fuse else ['', '']
    for x in wpre: k(x)
    srd_off(k, 8, 4, WS_HH, 64*224*1024)
    k(f's_lshl_b32 s22, s17, 3\ns_lshl_b32 s23, s{SW}, 1\ns_add_u32 s22, s22, s23\ns_mul_i32 s22, s22, 224\ns_mul_i32 s23, s18, 7\ns_add_u32 s22, s22, s23\ns_lshl_b32 s22, s22, 10')
    k(f's_add_u32 s23, s22, {224*1024}')
    for mt in range(2):
        for i in range(8): k(f'v_accvgpr_read_b32 v{225+i}, a{72+mt*SSN//2+i}')
        for i in range(8, SSN // 2): k(f'v_accvgpr_read_b32 v233, a{72+mt*SSN//2+i}\nv_add_f32 v{225+i%8}, v{225+i%8}, v233')
        for i in range(4): k(f'v_add_f32 v{225+i}, v{225+i}, v{229+i}')
        k('v_add_f32 v225, v225, v226\nv_add_f32 v227, v227, v228\nv_add_f32 v225, v225, v227')
        xhalf_add(k, 225, 226)
        k(f'v_mov_b32 v226, {f2u(1e-5)}\nv_fmac_f32 v226, {f2u(1/1024)}, v225\nv_rsq_f32 v227, v226\nv_sqrt_f32 v{246+4*mt}, v226\ns_nop 0\nv_mul_f32 v{244+4*mt}, {f2u(-LOG2E)}, v227')
    k(f'v_lshlrev_b32 v225, 4, v{VL}')
    EL = os.environ.get('EL', 'p')
    if EL != '0':
        LP = k.label('epi')
        k(f's_mov_b32 s28, 0\n{LP}:')
        for mt in range(2):
            t, o, b = 226, 234 + 4 * mt if mt == 0 else 252 - 14, mt * 16
            t = 226; o = 234 if mt == 0 else 242 - 4
            def ix(f):
                k('s_set_gpr_idx_on s28, 0x1\ns_nop 0'); f(); k('s_set_gpr_idx_off')
            if EL == 'p': ix(lambda: [k(f'v_pk_mul_f32 {v(t+i,2)}, {v(b+i,2)}, {v(244+4*mt,2)} op_sel_hi:[1,0]') for i in range(0, 8, 2)])
            else: ix(lambda: [k(f'v_mul_f32 v{t+i}, v{b+i}, v{244+4*mt}') for i in range(8)])
            for i in range(8): k(f'v_exp_f32 v{t+i}, v{t+i}')
            for i in range(0, 8, 2): k(f'v_pk_fma_f32 {v(t+i,2)}, {v(t+i,2)}, {v(246+4*mt,2)}, {v(246+4*mt,2)} op_sel_hi:[1,0,0]')
            k(wpre[mt])
            for i in range(8): k(f'v_rcp_f32 v{t+i}, v{t+i}')
            if EL == 'p': ix(lambda: [k(f'v_pk_mul_f32 {v(t+i,2)}, {v(b+8+i,2)}, {v(t+i,2)}') for i in range(0, 8, 2)])
            else: ix(lambda: [k(f'v_mul_f32 v{t+i}, v{b+8+i}, v{t+i}') for i in range(8)])
            for i in range(4): k(f'v_cvt_pk_bf16_f32 v{o+i}, v{t+2*i}, v{t+1+2*i}')
            k(f'buffer_store_dwordx4 v[{o}:{o+3}], v225, s[8:11], s{22+mt} offen\ns_add_u32 s{22+mt}, s{22+mt}, 1024')
        k(f's_add_u32 s28, s28, 32\ns_cmp_lg_u32 s28, 224\ns_cbranch_scc1 {LP}')
    if fuse: down_phase(k, VL, SW)
    if os.environ.get('RT'):
        k.sgpr = 102
        k('s_memrealtime s[66:67]\ns_waitcnt lgkmcnt(0)\nv_mov_b32 v0, s60\nv_mov_b32 v1, s62\nv_mov_b32 v2, s64\nv_mov_b32 v3, s66\nv_mov_b32 v4, 0\ns_lshr_b32 s56, s56, 8')
        srd_off(k, 8, 4, 0, 65536)
        k('buffer_store_dwordx4 v[0:3], v4, s[8:11], s56 offen')
    stamp_end(k)
    return k
```

```python
from common import *
class T1:
    pass
def t1_mainloop(k, c):
    KS = getattr(c, 'KS', 1)
    FS = (c.MT + c.NT) * 4 * KS
    fr = getattr(c, 'frag', a_); acc = getattr(c, 'acc', v)
    def xf(s_, ks, mt): return s_ * FS + ks * (c.MT + c.NT) * 4 + mt * 4
    def wf(s_, ks, nt): return s_ * FS + ks * (c.MT + c.NT) * 4 + c.MT * 4 + nt * 4
    c.xf = xf
    def reads(slot, j, s_):
        r = []
        for ks in range(KS):
            kt = j * KS + ks
            xs = [(xf(s_, ks, mt), f'ds_read_b128 {fr(xf(s_, ks, mt), 4)}, ' + (c.xaddr(slot, mt, kt) if hasattr(c, 'xaddr') else f'v{c.vX[slot]} offset:{c.xoff(mt, kt)}')) for mt in range(c.MT)]
            ws = [(wf(s_, ks, nt), f'ds_read_b64_tr_b16 {fr(wf(s_, ks, nt) + 2 * hf, 2)}, ' + (c.waddr(slot, nt, kt, hf) if hasattr(c, 'waddr') else f'v{c.vW[slot]} offset:{c.woff(nt, kt, hf)}')) for nt in range(c.NT) for hf in range(2)]
            if hasattr(c, 'wlast'): ws = ws[:-2] + [(wf(s_, ks, c.NT - 1), c.wlast(fr(wf(s_, ks, c.NT - 1), 4)))]
            if 'x' in os.environ.get('DX', '') and k.name.startswith('down'): xs = []
            if 'w' in os.environ.get('DX', '') and k.name.startswith('down'): ws = []
            r += xs[:1] + ws[:2] + xs[1:] + ws[2:]
            if hasattr(c, 'xreads'): r += c.xreads(s_, ks)
        return r
    def mfmas(s_, z=False):
        r = []
        for ks in range(KS):
            for nt in range(c.NT):
                for mt in range(c.MT):
                    sm = hasattr(c, 'wlast') and nt == c.NT - 1
                    d = acc((nt * c.MT + mt) * 16, 4 if sm else 16)
                    A, B = fr(wf(s_, ks, nt), 4), fr(xf(s_, ks, mt), 4)
                    if c.swap(nt): A, B = B, A
                    r.append(((wf(s_, ks, nt), xf(s_, ks, mt)), ('v_mfma_f32_16x16x32_bf16' if sm else 'v_mfma_f32_32x32x16_bf16') + f' {d}, {A}, {B}, ' + ('0' if z and ks == 0 else d)))
        return r
    q = []
    def need(tags):
        last = max([i for i, t in enumerate(q) if t in tags], default=-1)
        if last >= 0:
            n = len(q) - 1 - last
            n = min(n, 14)
            k(f's_waitcnt lgkmcnt({n})')
            del q[:len(q) - n]
    def run(mf, plan):
        for i, (tags, ins) in enumerate(mf):
            need(tags)
            k(ins)
            for t, x in plan[i]:
                if t == 'bar':
                    k(x); del q[:]
                elif isinstance(t, tuple):
                    need(t); k(x)
                else:
                    k(x)
                    if t is not None: q.append(t)
    def spread(plan, items, lo, hi):
        n = hi - lo
        for i in range(n): plan[lo + i] += items[i * len(items) // n:(i + 1) * len(items) // n]
    tailx = getattr(c, 'tailx', [])
    def stage(t, slot, dmaB, dmaA, wait):
        cnt = c.NSTAGES - c.NST
        add = len(tailx) if (t is not None and t > cnt) else 0
        d = [(None, x) for x in c.dma((slot - 1) % c.NST)[c.GA:]] if dmaB else []
        if d: d[-1] = (None, d[-1][1] + '\n' + c.adv)
        dA = [(None, x) for x in c.dma(slot)[:c.GA]] if dmaA else []
        if t == cnt + 1: d = [(None, x) for x in tailx]
        nd = max(1, c.SUB - 1)
        for j in range(c.SUB):
            s_ = j & 1
            mf = mfmas(s_, t == 0 and j == 0 and getattr(c, 'zero0', False)); n = len(mf)
            plan = [[] for _ in mf]
            if j < c.SUB - 1:
                spread(plan, reads(slot, j + 1, s_ ^ 1), 0, c.RS)
                spread(plan, d[j * len(d) // nd:(j + 1) * len(d) // nd], c.DS, n)
            elif wait is not None:
                plan[c.BP].append(('bar', 's_waitcnt lgkmcnt(0)\ns_barrier' if LD else f's_waitcnt vmcnt({int(wait * c.G) + add}) lgkmcnt(0)\ns_barrier'))
                spread(plan, reads((slot + 1) % c.NST, 0, s_ ^ 1), c.BP, min(n, c.BP + c.RS))
                spread(plan, dA, c.BP, n)
            if hasattr(c, 'extra'): spread(plan, c.extra(t, j, s_), c.XS, n)
            run(mf, plan)
    assert c.SUB % 2 == 0
    stamp(k, 1 + getattr(c, 'sb', 0))
    LD = getattr(c, 'loader', False)
    if LD:
        real_dma = c.dma; c.dma = lambda slot: []; c.adv = ''; c.GA = 0
    if hasattr(c, 'pro'): c.pro()
    else:
        for x in c.dma(0): k(x)
        k(c.adv)
        if hasattr(c, 'late'): c.late()
        pd = []
        for t in range(1, c.NST - 1):
            pd += c.dma(t) if not LD else ['']; pd[-1] += '\n' + c.adv
        pd += c.dma(c.NST - 1)[:c.GA]
        interleave(k, pd, [f'v_mov_b32 v{i}, 0' for i in range(0 if getattr(c, 'zero0', False) else c.MT * c.NT * 16)])
        if hasattr(c, 'late2'): c.late2()
        k('s_barrier' if LD else f's_waitcnt vmcnt({(c.NST - 2) * c.G + c.GA})\ns_barrier')
    stamp(k, 2 + getattr(c, 'sb', 0))
    for t_, x in reads(0, 0, 0): k(x); q.append(t_)
    if hasattr(c, 'atP0'): c.atP0()
    uni = getattr(c, 'uni', False)
    if uni:
        for x in tailx: k(x)
        tailx = []
    cnt = c.NSTAGES - c.NST
    peel = getattr(c, 'peel', [])
    for t, w in enumerate(peel): stage(t, t, True, True, w / c.G)
    iters = 0 if getattr(c, 'unroll', False) else (cnt - len(peel)) // c.NST
    if uni: iters = (c.NSTAGES - len(peel)) // c.NST; assert iters * c.NST + len(peel) == c.NSTAGES
    if iters:
        L = k.label('loop')
        k(f's_mov_b32 s{c.sCnt}, {iters}')
        k(L + ':')
        q0 = list(q)
        for sl in range(c.NST): stage(None, (len(peel) + sl) % c.NST, True, True, c.NST - 2)
        assert q == q0, (q, q0)
        k(f's_sub_u32 s{c.sCnt}, s{c.sCnt}, 1\ns_cmp_lg_u32 s{c.sCnt}, 0\ns_cbranch_scc1 {L}')
    stamp(k, 3 + getattr(c, 'sb', 0))
    for t in range(len(peel) + iters * c.NST, c.NSTAGES):
        stage(t, t % c.NST, t <= cnt, t < cnt, None if t == c.NSTAGES - 1 else min(c.NST - 2, c.NSTAGES - 2 - t))
    k('s_waitcnt vmcnt(0) lgkmcnt(0)\ns_nop 14')
    stamp(k, 4 + getattr(c, 'sb', 0))

def t1_loader(k, c, dma, adv, work=None):
    for t in range(c.NST):
        for x in dma(t): k(x)
        k(adv)
        if t == 0 and hasattr(c, 'llate'): c.llate()
    k(f's_waitcnt vmcnt({(c.NST - 1) * c.G})\ns_barrier')
    def step(slot, d, wait):
        rd, cp = work(slot) if work else ([], [])
        for x in rd: k(x)
        if d:
            dd = dma((slot - 1) % c.NST); dd[-1] += '\n' + adv
            h = len(dd) // 3
            for x in dd[:h]: k(x)
            if rd: k('s_waitcnt lgkmcnt(0)')
            interleave(k, dd[h:], cp)
        else:
            if rd: k('s_waitcnt lgkmcnt(0)')
            for x in cp: k(x)
        if wait is not None: k(f's_waitcnt vmcnt({wait * c.G})\ns_barrier')
    step(0, False, c.NST - 2)
    cnt = c.NSTAGES - c.NST
    iters = cnt // c.NST
    if iters:
        L = k.label('lloop')
        k(f's_mov_b32 s{c.sCnt}, {iters}\n{L}:')
        for i in range(c.NST): step((1 + i) % c.NST, True, c.NST - 2)
        k(f's_sub_u32 s{c.sCnt}, s{c.sCnt}, 1\ns_cmp_lg_u32 s{c.sCnt}, 0\ns_cbranch_scc1 {L}')
    for t in range(1 + iters * c.NST, c.NSTAGES):
        step(t % c.NST, t <= cnt, None if t == c.NSTAGES - 1 else min(c.NST - 2, c.NSTAGES - 2 - t))

def t1_worker(k, c, work):
    assert c.NST % 2 == 0
    k('s_barrier')
    def step(slot, first, bar):
        for x in work(slot, slot & 1)[0]: k(x)
        if not first:
            for x in work((slot - 1) % c.NST, (slot & 1) ^ 1)[1]: k(x)
        k('s_waitcnt lgkmcnt(0)')
        if bar: k('s_barrier')
    step(0, True, True)
    iters = (c.NSTAGES - 2) // c.NST
    L = k.label('wloop')
    k(f's_mov_b32 s{c.sCnt}, {iters}\n{L}:')
    for i in range(c.NST): step((1 + i) % c.NST, False, True)
    k(f's_sub_u32 s{c.sCnt}, s{c.sCnt}, 1\ns_cmp_lg_u32 s{c.sCnt}, 0\ns_cbranch_scc1 {L}')
    for t in range(1 + iters * c.NST, c.NSTAGES): step(t % c.NST, False, t < c.NSTAGES - 1)
    for x in work((c.NSTAGES - 1) % c.NST, (c.NSTAGES - 1) & 1)[1]: k(x)

def lane_setup(k, vl, sw):
    k(f'v_lshrrev_b32 v{vl}, 6, v0\ns_nop 0\nv_readfirstlane_b32 s{sw}, v{vl}\nv_and_b32 v{vl}, 63, v0')

def tr_lane_terms(k, vl, vg, vr, vc):
    k(f'v_lshrrev_b32 v{vg}, 4, v{vl}\nv_bfe_u32 v{vr}, v{vl}, 2, 2')
    k(f'v_and_b32 v{vc}, 1, v{vl}\nv_lshlrev_b32 v{vc}, 1, v{vc}\nv_bfe_u32 v{vc+1}, v{vl}, 1, 1\nv_or_b32 v{vc}, v{vc}, v{vc+1}')

def poll(k, va, soff, full):
    P, D = k.label('poll'), k.label('rdy')
    k(f's_mov_b32 s50, 0x40000\n{P}:\nbuffer_load_dword v251, v{va}, s[52:55], {soff} offen sc1\ns_waitcnt vmcnt(0)\nv_cmp_eq_u32 vcc, 0, v251')
    k(f's_and_b64 exec, exec, vcc\ns_cbranch_scc0 {D}\ns_sub_u32 s50, s50, 1\ns_cmp_lg_u32 s50, 0\ns_cbranch_scc1 {P}\n{D}:\ns_mov_b64 exec, -1')

DNST = int(os.environ.get('DN', 5)); vWd = 252
def down_w(slot):
    return [f's_add_u32 m0, s25, {slot*32768 + (b&1)*1024 + (b>>1)*8192}\ns_nop 0\nbuffer_load_dwordx4 v{vWd+b}, s[12:15], s27 offen lds' for b in range(4)]
AS = 104
def down_setup(k, VL, SW):
    T, VE = 238, 248
    def save(i, r): k(f'v_accvgpr_write_b32 a{AS+i}, v{r}')
    k('s_bfe_u32 s19, s2, 0x10002\ns_and_b32 s48, s2, 1\ns_lshl_b32 s48, s48, 3\ns_bfe_u32 s49, s2, 0x30003\ns_add_u32 s48, s48, s49')
    k('s_bfe_u32 s49, s2, 0x10001\ns_lshl_b32 s49, s49, 2\ns_lshr_b32 s20, s2, 6\ns_add_u32 s49, s49, s20')
    k(f'v_lshrrev_b32 v{T}, 3, v{VL}\nv_and_b32 v{T+1}, 7, v{VL}\nv_bfe_u32 v{T+2}, v{VL}, 4, 1\nv_lshlrev_b32 v{T+2}, 2, v{T+2}\nv_xor_b32 v{T+1}, v{T+1}, v{T+2}')
    k(f'v_lshlrev_b32 v{T}, 11, v{T}\nv_lshl_add_u32 v{T}, v{T+1}, 4, v{T}\ns_lshl_b32 s22, s{SW}, 15\ns_lshl_b32 s23, s49, 8\ns_add_u32 s22, s22, s23\ns_mul_i32 s23, s19, {1792*2048}\ns_add_u32 s22, s22, s23')
    k(f'v_add_u32 v{vWd}, s22, v{T}\nv_add_u32 v{vWd+1}, 0x4000, v{vWd}\nv_add_u32 v{vWd+2}, 128, v{vWd}\nv_add_u32 v{vWd+3}, 128, v{vWd+1}')
    srd(k, 12, 36, 3584 * 2048)
    if k.fuse < 2: srd_off(k, 52, 4, WS_FL, 262144)
    k(f's_lshl_b32 s46, s17, 2\ns_add_u32 s46, s46, s{SW}\ns_lshl_b32 s46, s46, 1\ns_lshr_b32 s47, s18, 4\ns_add_u32 s46, s46, s47\ns_lshl_b32 s46, s46, 10\ns_and_b32 s47, s18, 15\ns_lshl_b32 s47, s47, 2\ns_add_u32 s46, s46, s47')
    k(f's_and_b32 s20, s{SW}, 1\ns_lshr_b32 s21, s{SW}, 1')
    k('s_lshl_b32 s47, s48, 1\ns_add_u32 s47, s47, s21\ns_lshl_b32 s47, s47, 1\ns_add_u32 s47, s47, s19\ns_lshl_b32 s47, s47, 3\ns_add_u32 s47, s47, s49\ns_lshl_b32 s47, s47, 7')
    k(f's_lshl_b32 s35, s48, 2\ns_add_u32 s35, s35, s{SW}\ns_mul_i32 s22, s35, {224*1024}\ns_mul_i32 s23, s19, {112*1024}\ns_add_u32 s22, s22, s23\nv_lshlrev_b32 v{VE}, 4, v{VL}\nv_add_u32 v{T}, s22, v{VE}')
    save(0, T)
    k(f's_lshl_b32 s22, s21, 13\nv_add_u32 v{T}, s22, v{VE}'); save(1, T)
    tr_lane_terms(k, VL, T, T+1, T+2)
    k(f'v_and_b32 v{T+3}, 1, v{T}\nv_lshlrev_b32 v{T+3}, 1, v{T+3}\ns_lshl_b32 s22, s19, 2\nv_add_u32 v{T+3}, s22, v{T+3}')
    k(f'v_lshrrev_b32 v{T+4}, 1, v{T+2}\nv_add_u32 v{T+3}, v{T+3}, v{T+4}\nv_lshrrev_b32 v{T+4}, 1, v{T+1}\nv_lshlrev_b32 v{T+4}, 2, v{T+4}\nv_xor_b32 v{T+3}, v{T+3}, v{T+4}')
    k(f'v_lshlrev_b32 v{T+3}, 4, v{T+3}\nv_and_b32 v{T+4}, 1, v{T+2}\nv_lshl_add_u32 v{T+3}, v{T+4}, 3, v{T+3}\nv_lshl_add_u32 v{T+3}, v{T+1}, 7, v{T+3}')
    k(f'v_lshrrev_b32 v{T+4}, 1, v{T}\nv_lshl_add_u32 v{T+3}, v{T+4}, 10, v{T+3}\ns_lshl_b32 s22, s20, 13\nv_add_u32 v{T+3}, s22, v{T+3}')
    save(2, T + 3)
    k('s_lshl_b32 s35, s48, 2\ns_lshl_b32 s22, s21, 1\ns_add_u32 s35, s35, s22\ns_lshl_b32 s22, s35, 16')
    k('s_lshl_b32 s23, s49, 1\ns_add_u32 s23, s23, s20\ns_lshl_b32 s23, s23, 1\ns_add_u32 s23, s23, s19\ns_lshl_b32 s29, s23, 6\ns_add_u32 s29, s29, s22')
    k(f'v_and_b32 v{T}, 31, v{VL}\nv_lshlrev_b32 v{T}, 11, v{T}\nv_lshrrev_b32 v{T+1}, 5, v{VL}\nv_lshl_add_u32 v{T}, v{T+1}, 4, v{T}\nv_add_u32 v{T}, s29, v{T}')
    save(3, T)
    k(f's_lshl_b32 s29, s23, 11\ns_add_u32 s58, s29, s22\ns_add_u32 s59, s58, 0x10000')
    k(f's_lshl_b32 s56, s2, 2\ns_add_u32 s56, s56, s{SW}\ns_lshl_b32 s56, s56, 12\ns_xor_b32 s57, s56, {4 << 14}')
def down_pre(k, SW):
    k(f's_lshl_b32 s25, s{SW}, 11\ns_add_u32 s25, s25, 16384\ns_mov_b32 s27, 0\ns_mov_b32 s20, s25\ns_mov_b32 s21, 8192\ns_mov_b32 s29, 128\ns_barrier')
    return [f's_mov_b32 m0, s20\ns_nop 0\nbuffer_load_dwordx4 v{vWd}, s[12:15], s27 offen lds',
            f's_add_u32 m0, s20, 1024\ns_add_u32 s20, s20, s21\nbuffer_load_dwordx4 v{vWd+1}, s[12:15], s27 offen lds\ns_add_u32 s27, s27, s29\ns_xor_b32 s21, s21, {8192 ^ 24576}\ns_xor_b32 s29, s29, {128 ^ (131072 - 128)}']

def down_phase(k, VL, SW):
    assert DNST == 5
    c = T1(); c.SUB, c.NST, c.NSTAGES, c.MT, c.NT, c.KS, c.G = 2, DNST, 28, 2, 2, 2, 8
    c.SB = 32768; XB = 16384; c.sb = 100 if os.environ.get('PS') else 5; c.sCnt = 28; c.zero0 = True
    k.lds = max(k.lds, c.SB * c.NST)
    FR, RES, XC, vXd, VN, VE, VF, vX, vW, T = 64, 128, 144, 176, 181, 225, 187, 190, 194, 240
    k(f'v_lshlrev_b32 v{VF}, 7, v{VL}\nv_mov_b32 v250, 1')
    k(f'v_accvgpr_read_b32 v{vXd}, a{AS}\nv_accvgpr_read_b32 v{vX}, a{AS+1}\nv_accvgpr_read_b32 v{vW}, a{AS+2}\nv_accvgpr_read_b32 v{VN}, a{AS+3}')
    k(f's_lshl_b32 s24, s{SW}, 12\ns_mov_b32 s26, 0\nv_xor_b32 v{vW+1}, 64, v{vW}\nv_add_u32 v{VN+1}, 0x10000, v{VN}')
    for i in (1, 2): k(f'v_add_u32 v{vX+i}, {i*65536}, v{vX}\nv_add_u32 v{vW+2*i}, {i*65536}, v{vW}\nv_add_u32 v{vW+2*i+1}, {i*65536}, v{vW+1}')
    if k.fuse < 2: srd_off(k, 40, 4, WS_H, 4 * MB)
    else:
        srd_off(k, 40, 4, WS_HN, 21 * MB)
        k(f'v_and_b32 v189, 31, v{VL}\nv_lshlrev_b32 v189, 2, v189\ns_lshr_b32 s7, s58, 16\ns_lshl_b32 s7, s7, 7\ns_add_u32 s7, s7, {WS_MEANX + 8192 - WS_HN}')
    stamp(k, 13)
    k('s_waitcnt vmcnt(0)')
    stamp(k, 11)
    if os.environ.get('RT'): k('s_memrealtime s[62:63]')
    k(f'v_lshlrev_b32 v{VF+1}, 2, v{VL}\ns_mov_b64 exec, 0xff\nbuffer_store_dword v250, v{VF}, s[52:55], s46 offen sc1')
    c.xaddr = lambda sl, mt, kt: f'v{vX + sl//2} offset:{(sl&1)*c.SB + (mt*4 + kt)*1024}'
    c.waddr = lambda sl, nt, kt, hf: f'v{vW + sl//2*2 + nt} offset:{(sl&1)*c.SB + XB + kt*2048 + hf*512}'
    def dx(slot): return [(f's_add_u32 m0, s24, {slot*c.SB}\ns_nop 0\n' if j == 0 else '') + f'buffer_load_dwordx4 v{vXd}, s[8:11], s26 offen offset:{j*1024} lds' for j in range(4)]
    def pro():
        k('s_mov_b64 exec, 0xffff')
        poll(k, VF + 1, 's47', '0xffff')
        stamp(k, 5)
        if os.environ.get('RT'): k('s_memrealtime s[64:65]\ns_waitcnt lgkmcnt(0)')
        for t in range(c.NST):
            for x in dx(t): k(x)
            if t < c.NST - 1: k('s_add_u32 s26, s26, 4096')
        k(f's_waitcnt vmcnt({(c.NST - 1) * 4})\ns_barrier')
    c.peel = [min((c.NST - 3 - t) * 4 + (t + 1) * 8, (c.NST - 2) * 8) for t in range(c.NST)]
    c.pro = pro
    c.dma = lambda slot: dx(slot) + down_w(slot); c.adv = f's_add_u32 s26, s26, 4096\ns_add_u32 s27, s27, {64*2048}'
    c.tailx = [f'buffer_load_dwordx4 {v(RES+8*mt+4*q, 4)}, v{VE}, s[40:43], s{58+mt} offen offset:{q*1024}' for mt in range(2) for q in range(2)]
    if k.fuse == 2: c.tailx += [f'buffer_load_dword v{178+2*mt}, v189, s[40:43], s7 offen offset:{mt*128}' for mt in range(2)]
    c.frag = lambda i, n: v(FR + i, n)
    c.swap = lambda nt: False
    c.RS, c.DS, c.BP, c.GA = [int(x) for x in os.environ.get('DP', '6,1,1,4').split(',')]
    if 'd' in os.environ.get('UN', 'pgd'):
        c.uni = True; c.peel = c.peel[:3]; c.adv += f'\ns_cmp_ge_u32 s26, {28*4096}\ns_cselect_b32 s10, 0, s10\ns_cselect_b32 s14, 0, s14'
    t1_mainloop(k, c)
    srd_off(k, 8, 4, WS_XC, 4 * MB); srd(k, 44, 38, 4 * MB)
    for i in range(4):
        for j in range(4): k(f'v_cvt_pk_bf16_f32 v{FR+4*i+j}, v{32+8*i+2*j}, v{33+8*i+2*j}')
        k(f'buffer_store_dwordx4 {v(FR+4*i, 4)}, v{VE}, s[8:11], s56 offen offset:{i*1024} sc1 ;x')
    def addbf(src):
        for q in range(16):
            k(f'v_lshlrev_b32 v{T+2}, 16, v{src+q}\nv_and_b32 v{T+3}, 0xffff0000, v{src+q}\nv_pk_add_f32 {v(2*q,2)}, {v(2*q,2)}, {v(T+2,2)}')
    addbf(RES)
    if k.fuse == 2:
        for i in range(0, 32, 2): k(f'v_pk_add_f32 {v(i,2)}, {v(i,2)}, {v(178+i//16*2,2)} op_sel_hi:[1,0]')
    if 'w' in os.environ.get('MX', ''): k('s_waitcnt vmcnt(0)')
    stamp(k, 12)
    P, D = k.label('poll'), k.label('rdy')
    k(f's_mov_b32 s50, 0x40000\n{P}:')
    for i in range(4): k(f'buffer_load_dwordx4 {v(XC+4*i, 4)}, v{VE}, s[8:11], s57 offen offset:{i*1024} sc1')
    k(f's_waitcnt vmcnt(0)\nv_max_u32 v{T}, v{XC}, v{XC+1}')
    for i in range(2, 16, 2): k(f'v_max3_u32 v{T}, v{T}, v{XC+i}, v{XC+i+1}')
    k(f'v_cmp_eq_u32 vcc, -1, v{T}\ns_cbranch_vccz {D}\ns_sub_u32 s50, s50, 1\ns_cmp_lg_u32 s50, 0\ns_cbranch_scc1 {P}\n{D}:')
    stamp(k, 10)
    addbf(XC)
    for i in range(16): k(f'v_cvt_pk_bf16_f32 v{RES+i}, v{2*i}, v{2*i+1}')
    for i in range(4): k(f'buffer_store_dwordx4 {v(RES+4*i, 4)}, v{VN+i//2}, s[44:47], 0 offen offset:{(i%2)*32} ;x')

def proj_phase(k, VL, SW):
    c = T1(); c.SUB, c.NST, c.NSTAGES, c.MT, c.NT, c.KS, c.G = 2, 5 if 'p' in os.environ.get('UN', 'pgd') else 6, 16, 2, 2, 2, 6
    c.SB = 24576; XB = 16384; WBL = c.SB * c.NST; c.sCnt = 28; c.zero0 = True; c.unroll = True; c.sb = 0 if os.environ.get('PS') else 100
    FR, RES, vXd, vWp, VN, VP, MX, VB, vX, vW, T = 64, 128, 144, 145, 148, 150, 152, 155, 156, 160, 170
    k('s_and_b32 s17, s2, 3\ns_lshl_b32 s17, s17, 2\ns_bfe_u32 s18, s2, 0x20003\ns_add_u32 s17, s17, s18')
    k('s_bfe_u32 s18, s2, 0x10002\ns_lshl_b32 s18, s18, 3\ns_lshr_b32 s19, s2, 5\ns_add_u32 s18, s18, s19')
    k(f's_lshl_b32 s30, s17, 2\ns_add_u32 s30, s30, s{SW}\ns_lshl_b32 s22, s30, 16\nv_lshlrev_b32 v{VB}, 4, v{VL}\nv_add_u32 v{vXd}, s22, v{VB}')
    k(f'v_lshrrev_b32 v{T}, 3, v{VL}\nv_and_b32 v{T+1}, 7, v{VL}\nv_bfe_u32 v{T+2}, v{VL}, 4, 1\nv_lshlrev_b32 v{T+2}, 2, v{T+2}\nv_xor_b32 v{T+1}, v{T+1}, v{T+2}')
    k(f'v_lshlrev_b32 v{T}, 11, v{T}\nv_lshl_add_u32 v{T}, v{T+1}, 4, v{T}\ns_lshl_b32 s22, s{SW}, 15\ns_lshl_b32 s23, s18, 7\ns_add_u32 s22, s22, s23')
    k(f'v_add_u32 v{vWp}, s22, v{T}\nv_add_u32 v{vWp+1}, 0x4000, v{vWp}')
    k(f's_lshl_b32 s24, s{SW}, 12\ns_lshl_b32 s25, s{SW}, 11\ns_add_u32 s25, s25, {XB}\ns_mov_b32 s26, 0\ns_mov_b32 s27, 0')
    k(f's_and_b32 s20, s{SW}, 1\ns_lshr_b32 s21, s{SW}, 1\ns_lshl_b32 s22, s20, 10\ns_add_u32 m0, s22, {WBL}\ns_add_u32 s22, s22, {WS_WBAR - WS_MEANX}')
    k('s_waitcnt lgkmcnt(0)')
    srd_off(k, 48, 4, WS_MEANX, 65536 + 2048 * 4 * SSN); srd_off(k, 8, 4, WS_O, 4 * MB); srd(k, 12, 6, 2 * MB)
    k(f'buffer_load_dwordx4 v{VB}, s[48:51], s22 offen lds')
    def dma(slot):
        x = [(f's_add_u32 m0, s24, {slot*c.SB}\ns_nop 0\n' if j in (0, c.GA - 2) else '') + f'buffer_load_dwordx4 v{vXd}, s[8:11], s26 offen offset:{j*1024} lds' for j in range(4)]
        return [f's_add_u32 m0, s25, {slot*c.SB + b*1024}\ns_nop 0\nbuffer_load_dwordx4 v{vWp+b}, s[12:15], s27 offen lds' for b in range(2)] + x
    c.dma = dma; c.adv = f's_add_u32 s26, s26, 4096\ns_add_u32 s27, s27, {64*2048}'
    def late2():
        k(f's_lshl_b32 s22, s21, 13\nv_add_u32 v{vX}, s22, v{VB}')
        k('s_lshl_b32 s30, s17, 2\ns_lshl_b32 s22, s21, 1\ns_add_u32 s30, s30, s22')
        k(f's_lshl_b32 s22, s30, 16\ns_lshl_b32 s23, s18, 1\ns_add_u32 s23, s23, s20\ns_lshl_b32 s29, s23, 6\ns_add_u32 s29, s29, s22')
        k(f'v_and_b32 v{MX+2}, 31, v{VL}\nv_lshlrev_b32 v{T}, 11, v{MX+2}\nv_lshrrev_b32 v{T+1}, 5, v{VL}\nv_lshl_add_u32 v{T}, v{T+1}, 4, v{T}\nv_add_u32 v{VN}, s29, v{T}\nv_add_u32 v{VN+1}, 0x10000, v{VN}')
        k(f's_lshl_b32 s29, s23, 11\ns_add_u32 s29, s29, s22\nv_add_u32 v{VP}, s29, v{VB}\nv_add_u32 v{VP+1}, 0x10000, v{VP}')
        k(f's_lshl_b32 s22, s{SW}, 9\ns_add_u32 s22, s22, {WBL + 2048}\nv_lshl_add_u32 v{T}, v{VL}, 3, s22\nv_mov_b32 v{T+2}, 0\nv_mov_b32 v{T+3}, 0\nds_write_b64 v{T}, {v(T+2, 2)}')
        k(f'v_lshrrev_b32 v{T}, 2, v{VL}\nv_xor_b32 v{T}, v{T}, v{VL}\nv_bfe_u32 v{T}, v{T}, 2, 1\nv_lshl_add_u32 v{T+1}, v{T}, 7, v{T+1}')
        k(f'v_lshlrev_b32 v{VB}, 4, v{T+1}\nv_add_u32 v{VB}, {WBL}, v{VB}\nv_lshlrev_b32 v{MX+2}, 2, v{MX+2}\ns_lshl_b32 s31, s30, 7')
        tr_lane_terms(k, VL, T, T+1, T+2)
        k(f'v_and_b32 v{T+3}, 1, v{T}\nv_lshlrev_b32 v{T+3}, 1, v{T+3}\ns_lshl_b32 s22, s20, 2\nv_add_u32 v{T+3}, s22, v{T+3}')
        k(f'v_lshrrev_b32 v{T+4}, 1, v{T+2}\nv_add_u32 v{T+3}, v{T+3}, v{T+4}\nv_lshrrev_b32 v{T+4}, 1, v{T+1}\nv_lshlrev_b32 v{T+4}, 2, v{T+4}\nv_xor_b32 v{T+3}, v{T+3}, v{T+4}')
        k(f'v_lshlrev_b32 v{T+3}, 4, v{T+3}\nv_and_b32 v{T+4}, 1, v{T+2}\nv_lshl_add_u32 v{T+3}, v{T+4}, 3, v{T+3}\nv_lshl_add_u32 v{T+3}, v{T+1}, 7, v{T+3}')
        k(f'v_lshrrev_b32 v{T+4}, 1, v{T}\nv_lshl_add_u32 v{vW}, v{T+4}, 10, v{T+3}')
        for i in (1, 2): k(f'v_add_u32 v{vX+i}, {2*i*c.SB}, v{vX}\nv_add_u32 v{vW+i}, {2*i*c.SB}, v{vW}')
        srd_off(k, 40, 4, WS_HN, 4 * MB); srd(k, 44, 34, 4 * MB)
        k('s_waitcnt lgkmcnt(0)')
    c.late2 = late2
    c.xaddr = lambda sl, mt, kt: f'v{vX + sl//2} offset:{(sl&1)*c.SB + (mt*4 + kt)*1024}'
    c.waddr = lambda sl, nt, kt, hf: f'v{vW + sl//2} offset:{(sl&1)*c.SB + XB + kt*2048 + hf*512}'
    c.wk = -1
    def wlast(r): c.wk += 1; return f'ds_read_b128 {r}, v{VB} offset:{c.wk%4*32}' + (f'\nv_add_u32 v{VB}, 128, v{VB}' if c.wk % 4 == 3 else '')
    c.wlast = wlast
    c.tailx = [f'buffer_load_dwordx4 {v(RES+8*mt+4*q, 4)}, v{VN+mt}, s[44:47], 0 offen offset:{q*32}' for mt in range(2) for q in range(2)]
    c.tailx += [f'buffer_load_dword v{MX+mt}, v{MX+2}, s[48:51], s31 offen offset:{mt*128}' for mt in range(2)]
    c.frag = lambda i, n: v(FR + i, n)
    c.swap = lambda nt: False
    c.RS, c.DS, c.BP, c.GA = [int(x) for x in os.environ.get('PP', '6,1,1,4').split(',')]
    if 'p' in os.environ.get('UN', 'pgd'):
        c.uni = True; c.peel = [18]; c.adv += f'\ns_cmp_ge_u32 s26, {16*4096}\ns_cselect_b32 s10, 0, s10\ns_cselect_b32 s14, 0, s14'
    t1_mainloop(k, c)
    for q in range(16):
        k(f'v_lshlrev_b32 v{T+2}, 16, v{RES+q}\nv_and_b32 v{T+3}, 0xffff0000, v{RES+q}\nv_pk_add_f32 {v(2*q,2)}, {v(2*q,2)}, {v(T+2,2)}')
    NM = k.label('nomu')
    k(f'v_add_f32 v32, v32, v{MX}\nv_add_f32 v48, v48, v{MX+1}\ns_add_u32 s31, s31, 8192\ns_cmp_lg_u32 s23, 0\ns_cbranch_scc1 {NM}')
    for mt in range(2): k(f'buffer_store_dword v{32+16*mt}, v{MX+2}, s[48:51], s31 offen offset:{mt*128} sc1')
    k(NM + ':')
    for mt in range(2):
        for i in range(0, 16, 2): k(f'v_pk_add_f32 {v(16*mt+i,2)}, {v(16*mt+i,2)}, {v(32+16*mt,2)} op_sel_hi:[1,0] neg_lo:[0,1] neg_hi:[0,1]')
        for i in range(8): k(f'v_cvt_pk_bf16_f32 v{FR+8*mt+i}, v{16*mt+2*i}, v{16*mt+2*i+1}')
        for q in range(2): k(f'buffer_store_dwordx4 {v(FR+8*mt+4*q, 4)}, v{VP+mt}, s[40:43], 0 offen offset:{q*1024}')
    k('v_pk_mul_f32 v[32:33], v[0:1], v[0:1]\nv_pk_mul_f32 v[34:35], v[16:17], v[16:17]')
    for i in range(2, 16, 2): k(f'v_pk_fma_f32 v[32:33], {v(i,2)}, {v(i,2)}, v[32:33]\nv_pk_fma_f32 v[34:35], {v(16+i,2)}, {v(16+i,2)}, v[34:35]')
    k('v_add_f32 v32, v32, v33\nv_add_f32 v33, v34, v35')
    xhalf_add(k, 32, 34); xhalf_add(k, 33, 34)
    k(f'v_lshlrev_b32 v{MX+2}, 2, v{MX+2}\ns_lshr_b32 s22, s23, 2\ns_lshl_b32 s22, s22, 9\ns_and_b32 s23, s23, 3\ns_lshl_b32 s23, s23, 2\ns_add_u32 s23, s23, s22\ns_lshl_b32 s22, s30, 12\ns_add_u32 s22, s22, s23\ns_add_u32 s22, s22, {WS_SS - WS_MEANX}\ns_add_u32 s23, s22, 4096\ns_mov_b32 exec_hi, 0')
    for mt in range(2): k(f'buffer_store_dword v{32+mt}, v{MX+2}, s[48:51], s{22+mt} offen sc1')
    k('s_mov_b32 exec_hi, -1\ns_lshl_b32 s51, s17, 12\ns_lshl_b32 s22, s18, 2\ns_add_u32 s51, s51, s22\ns_add_u32 s51, s51, 65536')

def gateup_kernel(fuse=False):
    c = T1(); c.SUB, c.NST, c.NSTAGES, c.MT, c.NT, c.G = 2, 4, 32, 2, 7, 8
    XB = 16384; UP = 7168 + 128; c.SB = 30976; DUMMY = c.SB * c.NST
    k = K('mlp_kernel' if fuse else 'gateup_kernel', 256, 256, DUMMY + 1024, vgpr=256 + 72 + SSN, sgpr=60, accum=256)
    k.fuse = fuse
    if os.environ.get('PS'): c.sb = 100
    guard(k, 256)
    stamp(k, 0)
    if os.environ.get('RT'): k('s_memrealtime s[60:61]')
    k(f's_load_dwordx2 s[4:5], s[0:1], {ARG_WS}\ns_load_dwordx4 s[36:39], s[0:1], {ARG_WG}')
    VL = 224; SW = 16
    if fuse == 2: k(f's_load_dwordx2 s[6:7], s[0:1], {ARG_WO}\ns_load_dwordx2 s[34:35], s[0:1], {ARG_X}')
    lane_setup(k, VL, SW)
    if fuse == 2: proj_phase(k, VL, SW)
    k('s_and_b32 s17, s2, 1\ns_lshl_b32 s17, s17, 2\ns_bfe_u32 s18, s2, 0x20003\ns_add_u32 s17, s17, s18')
    k('s_bfe_u32 s18, s2, 0x20001\ns_lshl_b32 s18, s18, 3\ns_lshr_b32 s19, s2, 5\ns_add_u32 s18, s18, s19')
    vD = 225
    LW, LE = k.label('w'), k.label('e')
    k(f's_cmp_lt_u32 s{SW}, 2\ns_cbranch_scc1 {LW}')
    k(f's_sub_u32 s22, s{SW}, 2\ns_lshl_b32 s24, s22, 13\ns_lshl_b32 s22, s22, 2\ns_lshl_b32 s23, s17, 3\ns_add_u32 s22, s22, s23\ns_lshl_b32 s22, s22, 16')
    k(f'v_lshlrev_b32 v240, 4, v{VL}\nv_add_u32 v240, s22, v240')
    for i in range(8): k(f'v_add_u32 v{vD+i}, {(i>>1)*65536 + (i&1)*1024}, v240')
    k(f's_mov_b32 s27, 2048\ns_add_u32 s25, s24, {7*1024}\ns_mov_b32 s30, {c.SB}')
    k('s_waitcnt lgkmcnt(0)')
    srd_off(k, 8, 4, WS_HN, 4*MB)
    k(f's_branch {LE}')
    k(LW + ':')
    k(f's_mul_i32 s24, s{SW}, {UP}\ns_add_u32 s24, s24, {XB}\ns_mul_i32 s22, s18, 224')
    for i in range(7):
        k(f'v_add_u32 v240, {i*64}, v{VL}\nv_mul_u32_u24 v241, 4682, v240\nv_lshrrev_b32 v241, 16, v241\nv_mul_u32_u24 v241, {7168-224}, v241\nv_lshl_add_u32 v241, v240, 4, v241\nv_add_u32 v{vD+i}, s22, v241')
    k(f'v_mov_b32 v{vD+7}, 0x7f000000\ns_mov_b32 s27, {32*7168}\ns_mov_b32 s25, {DUMMY}\ns_mov_b32 s30, 0')
    k('s_waitcnt lgkmcnt(0)')
    k(f's_cmp_eq_u32 s{SW}, 0\ns_cselect_b32 s8, s36, s38\ns_cselect_b32 s9, s37, s39\ns_and_b32 s9, s9, 0xffff\ns_mov_b32 s10, {1024*7168}\ns_mov_b32 s11, 0x00020000')
    k(LE + ':')
    k('s_mov_b32 s26, 0\ns_mov_b32 s31, s25')
    def dma(slot):
        r = [f's_add_u32 m0, s24, {slot*c.SB + j*1024}\ns_nop 0\nbuffer_load_dwordx4 v{vD+j}, s[8:11], s26 offen lds' for j in range(7)]
        r.append(f's_mov_b32 m0, s{31+slot}\ns_nop 0\nbuffer_load_dwordx4 v{vD+7}, s[8:11], s26 offen lds')
        return r
    c.dma = dma; c.adv = 's_add_u32 s26, s26, s27'
    c.vX = [233 + i for i in range(4)]; c.vW = [244 + i for i in range(4)]
    def late():
        if fuse: k(f's_load_dwordx4 s[36:39], s[0:1], {ARG_WD}')
        for sl in range(1, 4): k(f's_add_u32 s{31+sl}, s{30+sl}, s30')
        srd_off(k, 40, 4, WS_SS, 131072 * SSN // 16)
        k(f'v_and_b32 v237, 31, v{VL}\nv_lshlrev_b32 v237, 4, v237\nv_lshrrev_b32 v241, 5, v{VL}\nv_lshl_add_u32 v237, v241, 11, v237')
        k(f's_lshl_b32 s44, s17, 2\ns_add_u32 s44, s44, s{SW}\ns_lshl_b32 s44, s44, 13\ns_add_u32 s45, s44, 4096')
        k(f's_lshl_b32 s22, s{SW}, 12\nv_lshlrev_b32 v240, 4, v{VL}\nv_add_u32 v240, s22, v240')
        for sl in range(4): k(f'v_add_u32 v{c.vX[sl]}, {sl*c.SB}, v240')
        tr_lane_terms(k, VL, 240, 241, 242)
        k(f'v_and_b32 v243, 1, v240\nv_mul_u32_u24 v243, {UP}, v243\nv_lshrrev_b32 v240, 1, v240\nv_lshl_add_u32 v240, v240, 3, v241\nv_mul_u32_u24 v240, 224, v240')
        k('v_add_u32 v243, v243, v240\nv_lshl_add_u32 v243, v242, 3, v243')
        for sl in range(4): k(f'v_add_u32 v{c.vW[sl]}, {sl*c.SB + XB}, v243')
        k('s_waitcnt lgkmcnt(0)')
    c.late = late
    if fuse: c.late2 = lambda: down_setup(k, VL, SW); k.vgpr += 8
    def pro():
        srd_off(k, 52, 4, WS_FL, 262144)
        A, B = k.label('nf'), k.label('np')
        k(f'v_lshlrev_b32 v0, 7, v{VL}\nv_lshlrev_b32 v249, 2, v{VL}\nv_mov_b32 v2, 1\ns_lshl_b32 s22, s17, 1\ns_add_u32 s22, s22, s{SW}\ns_add_u32 s22, s22, 14\ns_lshl_b32 s22, s22, 5\ns_add_u32 s22, s22, s18\ns_lshl_b32 s6, s22, 7')
        if os.environ.get('PS'): stamp(k, 6)
        k(f's_waitcnt vmcnt(0)\ns_barrier\ns_cmp_lg_u32 s{SW}, 0\ns_cbranch_scc1 {A}\ns_mov_b32 exec_hi, 0\nbuffer_store_dword v2, v0, s[52:55], s51 offen sc1\ns_mov_b32 exec_hi, -1\n{A}:')
        if os.environ.get('PS'): stamp(k, 7)
        late(); c.late2()
        if getattr(c, 'uni', False):
            k('s_lshl_b32 s29, s27, 5')
            for i in range(0, 224, 2): k(f'v_mov_b64 {v(i, 2)}, 0')
        if os.environ.get('PS'): stamp(k, 8)
        k(f's_cmp_lt_u32 s{SW}, 2\ns_cbranch_scc1 {B}\ns_mov_b64 exec, 0xffff')
        poll(k, 249, 's6', '0xffff')
        k(B + ':')
        for t in range(3):
            for x in dma(t): k(x)
            k(c.adv)
        for x in dma(3)[:4]: k(x)
        k('s_waitcnt vmcnt(20)\ns_barrier')
        if os.environ.get('PS'): stamp(k, 9)
    if fuse == 2: c.pro = pro
    c.tailx = [f'buffer_load_dwordx4 {a_(72+mt*16+4*q, 4)}, v237, s[40:43], s{44+mt} offen offset:{q*512}' for mt in range(2) for q in range(4)]
    c.xoff = lambda mt, j: (mt * 2 + j) * 1024
    c.woff = lambda nt, j, hf: (j * 16 + hf * 4) * 224 + nt * 32
    c.swap = lambda nt: False
    c.RS, c.DS, c.BP, c.GA = 8, 0, 2, 4
    if fuse == 2 and 'g' in os.environ.get('UN', 'pgd'):
        c.uni = True; c.adv += '\ns_cmp_ge_u32 s26, s29\ns_cselect_b32 s10, 0, s10'
    elif os.environ.get('GZ', '1') == '1': c.zero0 = True; c.peel = [16] * 4
    c.sCnt = 28
    t1_mainloop(k, c)
    wpre = down_pre(k, SW) if fuse else ['', '']
    for x in wpre: k(x)
    srd_off(k, 8, 4, WS_HH, 64*224*1024)
    k(f's_lshl_b32 s22, s17, 3\ns_lshl_b32 s23, s{SW}, 1\ns_add_u32 s22, s22, s23\ns_mul_i32 s22, s22, 224\ns_mul_i32 s23, s18, 7\ns_add_u32 s22, s22, s23\ns_lshl_b32 s22, s22, 10')
    k(f's_add_u32 s23, s22, {224*1024}')
    for mt in range(2):
        for i in range(8): k(f'v_accvgpr_read_b32 v{225+i}, a{72+mt*SSN//2+i}')
        for i in range(8, SSN // 2): k(f'v_accvgpr_read_b32 v233, a{72+mt*SSN//2+i}\nv_add_f32 v{225+i%8}, v{225+i%8}, v233')
        for i in range(4): k(f'v_add_f32 v{225+i}, v{225+i}, v{229+i}')
        k('v_add_f32 v225, v225, v226\nv_add_f32 v227, v227, v228\nv_add_f32 v225, v225, v227')
        xhalf_add(k, 225, 226)
        k(f'v_mov_b32 v226, {f2u(1e-5)}\nv_fmac_f32 v226, {f2u(1/1024)}, v225\nv_rsq_f32 v227, v226\nv_sqrt_f32 v{246+4*mt}, v226\ns_nop 0\nv_mul_f32 v{244+4*mt}, {f2u(-LOG2E)}, v227')
    k(f'v_lshlrev_b32 v225, 4, v{VL}')
    EL = os.environ.get('EL', 'p')
    if EL != '0':
        LP = k.label('epi')
        k(f's_mov_b32 s28, 0\n{LP}:')
        for mt in range(2):
            t, o, b = 226, 234 + 4 * mt if mt == 0 else 252 - 14, mt * 16
            t = 226; o = 234 if mt == 0 else 242 - 4
            def ix(f):
                k('s_set_gpr_idx_on s28, 0x1\ns_nop 0'); f(); k('s_set_gpr_idx_off')
            if EL == 'p': ix(lambda: [k(f'v_pk_mul_f32 {v(t+i,2)}, {v(b+i,2)}, {v(244+4*mt,2)} op_sel_hi:[1,0]') for i in range(0, 8, 2)])
            else: ix(lambda: [k(f'v_mul_f32 v{t+i}, v{b+i}, v{244+4*mt}') for i in range(8)])
            for i in range(8): k(f'v_exp_f32 v{t+i}, v{t+i}')
            for i in range(0, 8, 2): k(f'v_pk_fma_f32 {v(t+i,2)}, {v(t+i,2)}, {v(246+4*mt,2)}, {v(246+4*mt,2)} op_sel_hi:[1,0,0]')
            k(wpre[mt])
            for i in range(8): k(f'v_rcp_f32 v{t+i}, v{t+i}')
            if EL == 'p': ix(lambda: [k(f'v_pk_mul_f32 {v(t+i,2)}, {v(b+8+i,2)}, {v(t+i,2)}') for i in range(0, 8, 2)])
            else: ix(lambda: [k(f'v_mul_f32 v{t+i}, v{b+8+i}, v{t+i}') for i in range(8)])
            for i in range(4): k(f'v_cvt_pk_bf16_f32 v{o+i}, v{t+2*i}, v{t+1+2*i}')
            k(f'buffer_store_dwordx4 v[{o}:{o+3}], v225, s[8:11], s{22+mt} offen\ns_add_u32 s{22+mt}, s{22+mt}, 1024')
        k(f's_add_u32 s28, s28, 32\ns_cmp_lg_u32 s28, 224\ns_cbranch_scc1 {LP}')
    if fuse: down_phase(k, VL, SW)
    if os.environ.get('RT'):
        k.sgpr = 102
        k('s_memrealtime s[66:67]\ns_waitcnt lgkmcnt(0)\nv_mov_b32 v0, s60\nv_mov_b32 v1, s62\nv_mov_b32 v2, s64\nv_mov_b32 v3, s66\nv_mov_b32 v4, 0\ns_lshr_b32 s56, s56, 8')
        srd_off(k, 8, 4, 0, 65536)
        k('buffer_store_dwordx4 v[0:3], v4, s[8:11], s56 offen')
    stamp_end(k)
    return k
```

```python
from common import *
class T1:
    pass
def t1_mainloop(k, c):
    KS = getattr(c, 'KS', 1)
    FS = (c.MT + c.NT) * 4 * KS
    fr = getattr(c, 'frag', a_); acc = getattr(c, 'acc', v)
    def xf(s_, ks, mt): return s_ * FS + ks * (c.MT + c.NT) * 4 + mt * 4
    def wf(s_, ks, nt): return s_ * FS + ks * (c.MT + c.NT) * 4 + c.MT * 4 + nt * 4
    c.xf = xf
    def reads(slot, j, s_):
        r = []
        for ks in range(KS):
            kt = j * KS + ks
            xs = [(xf(s_, ks, mt), f'ds_read_b128 {fr(xf(s_, ks, mt), 4)}, ' + (c.xaddr(slot, mt, kt) if hasattr(c, 'xaddr') else f'v{c.vX[slot]} offset:{c.xoff(mt, kt)}')) for mt in range(c.MT)]
            ws = [(wf(s_, ks, nt), f'ds_read_b64_tr_b16 {fr(wf(s_, ks, nt) + 2 * hf, 2)}, ' + (c.waddr(slot, nt, kt, hf) if hasattr(c, 'waddr') else f'v{c.vW[slot]} offset:{c.woff(nt, kt, hf)}')) for nt in range(c.NT) for hf in range(2)]
            if hasattr(c, 'wlast'): ws = ws[:-2] + [(wf(s_, ks, c.NT - 1), c.wlast(fr(wf(s_, ks, c.NT - 1), 4)))]
            if 'x' in os.environ.get('DX', '') and k.name.startswith('down'): xs = []
            if 'w' in os.environ.get('DX', '') and k.name.startswith('down'): ws = []
            r += xs[:1] + ws[:2] + xs[1:] + ws[2:]
            if hasattr(c, 'xreads'): r += c.xreads(s_, ks)
        return r
    def mfmas(s_, z=False):
        r = []
        for ks in range(KS):
            for nt in range(c.NT):
                for mt in range(c.MT):
                    sm = hasattr(c, 'wlast') and nt == c.NT - 1
                    d = acc((nt * c.MT + mt) * 16, 4 if sm else 16)
                    A, B = fr(wf(s_, ks, nt), 4), fr(xf(s_, ks, mt), 4)
                    if c.swap(nt): A, B = B, A
                    r.append(((wf(s_, ks, nt), xf(s_, ks, mt)), ('v_mfma_f32_16x16x32_bf16' if sm else 'v_mfma_f32_32x32x16_bf16') + f' {d}, {A}, {B}, ' + ('0' if z and ks == 0 else d)))
        return r
    q = []
    def need(tags):
        last = max([i for i, t in enumerate(q) if t in tags], default=-1)
        if last >= 0:
            n = len(q) - 1 - last
            n = min(n, 14)
            k(f's_waitcnt lgkmcnt({n})')
            del q[:len(q) - n]
    def run(mf, plan):
        for i, (tags, ins) in enumerate(mf):
            need(tags)
            k(ins)
            for t, x in plan[i]:
                if t == 'bar':
                    k(x); del q[:]
                elif isinstance(t, tuple):
                    need(t); k(x)
                else:
                    k(x)
                    if t is not None: q.append(t)
    def spread(plan, items, lo, hi):
        n = hi - lo
        for i in range(n): plan[lo + i] += items[i * len(items) // n:(i + 1) * len(items) // n]
    tailx = getattr(c, 'tailx', [])
    def stage(t, slot, dmaB, dmaA, wait):
        cnt = c.NSTAGES - c.NST
        add = len(tailx) if (t is not None and t > cnt) else 0
        d = [(None, x) for x in c.dma((slot - 1) % c.NST)[c.GA:]] if dmaB else []
        if d: d[-1] = (None, d[-1][1] + '\n' + c.adv)
        dA = [(None, x) for x in c.dma(slot)[:c.GA]] if dmaA else []
        if t == cnt + 1: d = [(None, x) for x in tailx]
        nd = max(1, c.SUB - 1)
        for j in range(c.SUB):
            s_ = j & 1
            mf = mfmas(s_, t == 0 and j == 0 and getattr(c, 'zero0', False)); n = len(mf)
            plan = [[] for _ in mf]
            if j < c.SUB - 1:
                spread(plan, reads(slot, j + 1, s_ ^ 1), 0, c.RS)
                spread(plan, d[j * len(d) // nd:(j + 1) * len(d) // nd], c.DS, n)
            elif wait is not None:
                plan[c.BP].append(('bar', 's_waitcnt lgkmcnt(0)\ns_barrier' if LD else f's_waitcnt vmcnt({int(wait * c.G) + add}) lgkmcnt(0)\ns_barrier'))
                spread(plan, reads((slot + 1) % c.NST, 0, s_ ^ 1), c.BP, min(n, c.BP + c.RS))
                spread(plan, dA, c.BP, n)
            if hasattr(c, 'extra'): spread(plan, c.extra(t, j, s_), c.XS, n)
            run(mf, plan)
    assert c.SUB % 2 == 0
    stamp(k, 1 + getattr(c, 'sb', 0))
    LD = getattr(c, 'loader', False)
    if LD:
        real_dma = c.dma; c.dma = lambda slot: []; c.adv = ''; c.GA = 0
    if hasattr(c, 'pro'): c.pro()
    else:
        for x in c.dma(0): k(x)
        k(c.adv)
        if hasattr(c, 'late'): c.late()
        pd = []
        for t in range(1, c.NST - 1):
            pd += c.dma(t) if not LD else ['']; pd[-1] += '\n' + c.adv
        pd += c.dma(c.NST - 1)[:c.GA]
        interleave(k, pd, [f'v_mov_b32 v{i}, 0' for i in range(0 if getattr(c, 'zero0', False) else c.MT * c.NT * 16)])
        if hasattr(c, 'late2'): c.late2()
        k('s_barrier' if LD else f's_waitcnt vmcnt({(c.NST - 2) * c.G + c.GA})\ns_barrier')
    stamp(k, 2 + getattr(c, 'sb', 0))
    for t_, x in reads(0, 0, 0): k(x); q.append(t_)
    if hasattr(c, 'atP0'): c.atP0()
    uni = getattr(c, 'uni', False)
    if uni:
        for x in tailx: k(x)
        tailx = []
    cnt = c.NSTAGES - c.NST
    peel = getattr(c, 'peel', [])
    for t, w in enumerate(peel): stage(t, t, True, True, w / c.G)
    iters = 0 if getattr(c, 'unroll', False) else (cnt - len(peel)) // c.NST
    if uni: iters = (c.NSTAGES - len(peel)) // c.NST; assert iters * c.NST + len(peel) == c.NSTAGES
    if iters:
        L = k.label('loop')
        k(f's_mov_b32 s{c.sCnt}, {iters}')
        k(L + ':')
        q0 = list(q)
        for sl in range(c.NST): stage(None, (len(peel) + sl) % c.NST, True, True, c.NST - 2)
        assert q == q0, (q, q0)
        k(f's_sub_u32 s{c.sCnt}, s{c.sCnt}, 1\ns_cmp_lg_u32 s{c.sCnt}, 0\ns_cbranch_scc1 {L}')
    stamp(k, 3 + getattr(c, 'sb', 0))
    for t in range(len(peel) + iters * c.NST, c.NSTAGES):
        stage(t, t % c.NST, t <= cnt, t < cnt, None if t == c.NSTAGES - 1 else min(c.NST - 2, c.NSTAGES - 2 - t))
    k('s_waitcnt vmcnt(0) lgkmcnt(0)\ns_nop 14')
    stamp(k, 4 + getattr(c, 'sb', 0))

def t1_loader(k, c, dma, adv, work=None):
    for t in range(c.NST):
        for x in dma(t): k(x)
        k(adv)
        if t == 0 and hasattr(c, 'llate'): c.llate()
    k(f's_waitcnt vmcnt({(c.NST - 1) * c.G})\ns_barrier')
    def step(slot, d, wait):
        rd, cp = work(slot) if work else ([], [])
        for x in rd: k(x)
        if d:
            dd = dma((slot - 1) % c.NST); dd[-1] += '\n' + adv
            h = len(dd) // 3
            for x in dd[:h]: k(x)
            if rd: k('s_waitcnt lgkmcnt(0)')
            interleave(k, dd[h:], cp)
        else:
            if rd: k('s_waitcnt lgkmcnt(0)')
            for x in cp: k(x)
        if wait is not None: k(f's_waitcnt vmcnt({wait * c.G})\ns_barrier')
    step(0, False, c.NST - 2)
    cnt = c.NSTAGES - c.NST
    iters = cnt // c.NST
    if iters:
        L = k.label('lloop')
        k(f's_mov_b32 s{c.sCnt}, {iters}\n{L}:')
        for i in range(c.NST): step((1 + i) % c.NST, True, c.NST - 2)
        k(f's_sub_u32 s{c.sCnt}, s{c.sCnt}, 1\ns_cmp_lg_u32 s{c.sCnt}, 0\ns_cbranch_scc1 {L}')
    for t in range(1 + iters * c.NST, c.NSTAGES):
        step(t % c.NST, t <= cnt, None if t == c.NSTAGES - 1 else min(c.NST - 2, c.NSTAGES - 2 - t))

def t1_worker(k, c, work):
    assert c.NST % 2 == 0
    k('s_barrier')
    def step(slot, first, bar):
        for x in work(slot, slot & 1)[0]: k(x)
        if not first:
            for x in work((slot - 1) % c.NST, (slot & 1) ^ 1)[1]: k(x)
        k('s_waitcnt lgkmcnt(0)')
        if bar: k('s_barrier')
    step(0, True, True)
    iters = (c.NSTAGES - 2) // c.NST
    L = k.label('wloop')
    k(f's_mov_b32 s{c.sCnt}, {iters}\n{L}:')
    for i in range(c.NST): step((1 + i) % c.NST, False, True)
    k(f's_sub_u32 s{c.sCnt}, s{c.sCnt}, 1\ns_cmp_lg_u32 s{c.sCnt}, 0\ns_cbranch_scc1 {L}')
    for t in range(1 + iters * c.NST, c.NSTAGES): step(t % c.NST, False, t < c.NSTAGES - 1)
    for x in work((c.NSTAGES - 1) % c.NST, (c.NSTAGES - 1) & 1)[1]: k(x)

def lane_setup(k, vl, sw):
    k(f'v_lshrrev_b32 v{vl}, 6, v0\ns_nop 0\nv_readfirstlane_b32 s{sw}, v{vl}\nv_and_b32 v{vl}, 63, v0')

def tr_lane_terms(k, vl, vg, vr, vc):
    k(f'v_lshrrev_b32 v{vg}, 4, v{vl}\nv_bfe_u32 v{vr}, v{vl}, 2, 2')
    k(f'v_and_b32 v{vc}, 1, v{vl}\nv_lshlrev_b32 v{vc}, 1, v{vc}\nv_bfe_u32 v{vc+1}, v{vl}, 1, 1\nv_or_b32 v{vc}, v{vc}, v{vc+1}')

def poll(k, va, soff, full):
    P, D = k.label('poll'), k.label('rdy')
    k(f's_mov_b32 s50, 0x40000\n{P}:\nbuffer_load_dword v251, v{va}, s[52:55], {soff} offen sc1\ns_waitcnt vmcnt(0)\nv_cmp_eq_u32 vcc, 0, v251')
    k(f's_and_b64 exec, exec, vcc\ns_cbranch_scc0 {D}\ns_sub_u32 s50, s50, 1\ns_cmp_lg_u32 s50, 0\ns_cbranch_scc1 {P}\n{D}:\ns_mov_b64 exec, -1')

DNST = int(os.environ.get('DN', 5)); vWd = 252
def down_w(slot):
    return [f's_add_u32 m0, s25, {slot*32768 + (b&1)*1024 + (b>>1)*8192}\ns_nop 0\nbuffer_load_dwordx4 v{vWd+b}, s[12:15], s27 offen lds' for b in range(4)]
AS = 104
def down_setup(k, VL, SW):
    T, VE = 238, 248
    def save(i, r): k(f'v_accvgpr_write_b32 a{AS+i}, v{r}')
    k('s_bfe_u32 s19, s2, 0x10002\ns_and_b32 s48, s2, 1\ns_lshl_b32 s48, s48, 3\ns_bfe_u32 s49, s2, 0x30003\ns_add_u32 s48, s48, s49')
    k('s_bfe_u32 s49, s2, 0x10001\ns_lshl_b32 s49, s49, 2\ns_lshr_b32 s20, s2, 6\ns_add_u32 s49, s49, s20')
    k(f'v_lshrrev_b32 v{T}, 3, v{VL}\nv_and_b32 v{T+1}, 7, v{VL}\nv_bfe_u32 v{T+2}, v{VL}, 4, 1\nv_lshlrev_b32 v{T+2}, 2, v{T+2}\nv_xor_b32 v{T+1}, v{T+1}, v{T+2}')
    k(f'v_lshlrev_b32 v{T}, 11, v{T}\nv_lshl_add_u32 v{T}, v{T+1}, 4, v{T}\ns_lshl_b32 s22, s{SW}, 15\ns_lshl_b32 s23, s49, 8\ns_add_u32 s22, s22, s23\ns_mul_i32 s23, s19, {1792*2048}\ns_add_u32 s22, s22, s23')
    k(f'v_add_u32 v{vWd}, s22, v{T}\nv_add_u32 v{vWd+1}, 0x4000, v{vWd}\nv_add_u32 v{vWd+2}, 128, v{vWd}\nv_add_u32 v{vWd+3}, 128, v{vWd+1}')
    srd(k, 12, 36, 3584 * 2048)
    if k.fuse < 2: srd_off(k, 52, 4, WS_FL, 262144)
    k(f's_lshl_b32 s46, s17, 2\ns_add_u32 s46, s46, s{SW}\ns_lshl_b32 s46, s46, 1\ns_lshr_b32 s47, s18, 4\ns_add_u32 s46, s46, s47\ns_lshl_b32 s46, s46, 10\ns_and_b32 s47, s18, 15\ns_lshl_b32 s47, s47, 2\ns_add_u32 s46, s46, s47')
    k(f's_and_b32 s20, s{SW}, 1\ns_lshr_b32 s21, s{SW}, 1')
    k('s_lshl_b32 s47, s48, 1\ns_add_u32 s47, s47, s21\ns_lshl_b32 s47, s47, 1\ns_add_u32 s47, s47, s19\ns_lshl_b32 s47, s47, 3\ns_add_u32 s47, s47, s49\ns_lshl_b32 s47, s47, 7')
    k(f's_lshl_b32 s35, s48, 2\ns_add_u32 s35, s35, s{SW}\ns_mul_i32 s22, s35, {224*1024}\ns_mul_i32 s23, s19, {112*1024}\ns_add_u32 s22, s22, s23\nv_lshlrev_b32 v{VE}, 4, v{VL}\nv_add_u32 v{T}, s22, v{VE}')
    save(0, T)
    k(f's_lshl_b32 s22, s21, 13\nv_add_u32 v{T}, s22, v{VE}'); save(1, T)
    tr_lane_terms(k, VL, T, T+1, T+2)
    k(f'v_and_b32 v{T+3}, 1, v{T}\nv_lshlrev_b32 v{T+3}, 1, v{T+3}\ns_lshl_b32 s22, s19, 2\nv_add_u32 v{T+3}, s22, v{T+3}')
    k(f'v_lshrrev_b32 v{T+4}, 1, v{T+2}\nv_add_u32 v{T+3}, v{T+3}, v{T+4}\nv_lshrrev_b32 v{T+4}, 1, v{T+1}\nv_lshlrev_b32 v{T+4}, 2, v{T+4}\nv_xor_b32 v{T+3}, v{T+3}, v{T+4}')
    k(f'v_lshlrev_b32 v{T+3}, 4, v{T+3}\nv_and_b32 v{T+4}, 1, v{T+2}\nv_lshl_add_u32 v{T+3}, v{T+4}, 3, v{T+3}\nv_lshl_add_u32 v{T+3}, v{T+1}, 7, v{T+3}')
    k(f'v_lshrrev_b32 v{T+4}, 1, v{T}\nv_lshl_add_u32 v{T+3}, v{T+4}, 10, v{T+3}\ns_lshl_b32 s22, s20, 13\nv_add_u32 v{T+3}, s22, v{T+3}')
    save(2, T + 3)
    k('s_lshl_b32 s35, s48, 2\ns_lshl_b32 s22, s21, 1\ns_add_u32 s35, s35, s22\ns_lshl_b32 s22, s35, 16')
    k('s_lshl_b32 s23, s49, 1\ns_add_u32 s23, s23, s20\ns_lshl_b32 s23, s23, 1\ns_add_u32 s23, s23, s19\ns_lshl_b32 s29, s23, 6\ns_add_u32 s29, s29, s22')
    k(f'v_and_b32 v{T}, 31, v{VL}\nv_lshlrev_b32 v{T}, 11, v{T}\nv_lshrrev_b32 v{T+1}, 5, v{VL}\nv_lshl_add_u32 v{T}, v{T+1}, 4, v{T}\nv_add_u32 v{T}, s29, v{T}')
    save(3, T)
    k(f's_lshl_b32 s29, s23, 11\ns_add_u32 s58, s29, s22\ns_add_u32 s59, s58, 0x10000')
    k(f's_lshl_b32 s56, s2, 2\ns_add_u32 s56, s56, s{SW}\ns_lshl_b32 s56, s56, 12\ns_xor_b32 s57, s56, {4 << 14}')
def down_pre(k, SW):
    k(f's_lshl_b32 s25, s{SW}, 11\ns_add_u32 s25, s25, 16384\ns_mov_b32 s27, 0\ns_mov_b32 s20, s25\ns_mov_b32 s21, 8192\ns_mov_b32 s29, 128\ns_barrier')
    return [f's_mov_b32 m0, s20\ns_nop 0\nbuffer_load_dwordx4 v{vWd}, s[12:15], s27 offen lds',
            f's_add_u32 m0, s20, 1024\ns_add_u32 s20, s20, s21\nbuffer_load_dwordx4 v{vWd+1}, s[12:15], s27 offen lds\ns_add_u32 s27, s27, s29\ns_xor_b32 s21, s21, {8192 ^ 24576}\ns_xor_b32 s29, s29, {128 ^ (131072 - 128)}']

def down_phase(k, VL, SW):
    assert DNST == 5
    c = T1(); c.SUB, c.NST, c.NSTAGES, c.MT, c.NT, c.KS, c.G = 2, DNST, 28, 2, 2, 2, 8
    c.SB = 32768; XB = 16384; c.sb = 100 if os.environ.get('PS') else 5; c.sCnt = 28; c.zero0 = True
    k.lds = max(k.lds, c.SB * c.NST)
    FR, RES, XC, vXd, VN, VE, VF, vX, vW, T = 64, 128, 144, 176, 181, 225, 187, 190, 194, 240
    k(f'v_lshlrev_b32 v{VF}, 7, v{VL}\nv_mov_b32 v250, 1')
    k(f'v_accvgpr_read_b32 v{vXd}, a{AS}\nv_accvgpr_read_b32 v{vX}, a{AS+1}\nv_accvgpr_read_b32 v{vW}, a{AS+2}\nv_accvgpr_read_b32 v{VN}, a{AS+3}')
    k(f's_lshl_b32 s24, s{SW}, 12\ns_mov_b32 s26, 0\nv_xor_b32 v{vW+1}, 64, v{vW}\nv_add_u32 v{VN+1}, 0x10000, v{VN}')
    for i in (1, 2): k(f'v_add_u32 v{vX+i}, {i*65536}, v{vX}\nv_add_u32 v{vW+2*i}, {i*65536}, v{vW}\nv_add_u32 v{vW+2*i+1}, {i*65536}, v{vW+1}')
    if k.fuse < 2: srd_off(k, 40, 4, WS_H, 4 * MB)
    else:
        srd_off(k, 40, 4, WS_HN, 21 * MB)
        k(f'v_and_b32 v189, 31, v{VL}\nv_lshlrev_b32 v189, 2, v189\ns_lshr_b32 s7, s58, 16\ns_lshl_b32 s7, s7, 7\ns_add_u32 s7, s7, {WS_MEANX + 8192 - WS_HN}')
    stamp(k, 13)
    k('s_waitcnt vmcnt(0)')
    stamp(k, 11)
    if os.environ.get('RT'): k('s_memrealtime s[62:63]')
    k(f'v_lshlrev_b32 v{VF+1}, 2, v{VL}\ns_mov_b64 exec, 0xff\nbuffer_store_dword v250, v{VF}, s[52:55], s46 offen sc1')
    c.xaddr = lambda sl, mt, kt: f'v{vX + sl//2} offset:{(sl&1)*c.SB + (mt*4 + kt)*1024}'
    c.waddr = lambda sl, nt, kt, hf: f'v{vW + sl//2*2 + nt} offset:{(sl&1)*c.SB + XB + kt*2048 + hf*512}'
    def dx(slot): return [(f's_add_u32 m0, s24, {slot*c.SB}\ns_nop 0\n' if j == 0 else '') + f'buffer_load_dwordx4 v{vXd}, s[8:11], s26 offen offset:{j*1024} lds' for j in range(4)]
    def pro():
        k('s_mov_b64 exec, 0xffff')
        poll(k, VF + 1, 's47', '0xffff')
        stamp(k, 5)
        if os.environ.get('RT'): k('s_memrealtime s[64:65]\ns_waitcnt lgkmcnt(0)')
        for t in range(c.NST):
            for x in dx(t): k(x)
            if t < c.NST - 1: k('s_add_u32 s26, s26, 4096')
        k(f's_waitcnt vmcnt({(c.NST - 1) * 4})\ns_barrier')
    c.peel = [min((c.NST - 3 - t) * 4 + (t + 1) * 8, (c.NST - 2) * 8) for t in range(c.NST)]
    c.pro = pro
    c.dma = lambda slot: dx(slot) + down_w(slot); c.adv = f's_add_u32 s26, s26, 4096\ns_add_u32 s27, s27, {64*2048}'
    c.tailx = [f'buffer_load_dwordx4 {v(RES+8*mt+4*q, 4)}, v{VE}, s[40:43], s{58+mt} offen offset:{q*1024}' for mt in range(2) for q in range(2)]
    if k.fuse == 2: c.tailx += [f'buffer_load_dword v{178+2*mt}, v189, s[40:43], s7 offen offset:{mt*128}' for mt in range(2)]
    c.frag = lambda i, n: v(FR + i, n)
    c.swap = lambda nt: False
    c.RS, c.DS, c.BP, c.GA = [int(x) for x in os.environ.get('DP', '6,1,1,4').split(',')]
    c.peel = c.peel[:3]
    if 'd' in os.environ.get('UN', 'x'):
        c.uni = True; c.peel = c.peel[:3]; c.adv += f'\ns_cmp_ge_u32 s26, {28*4096}\ns_cselect_b32 s10, 0, s10\ns_cselect_b32 s14, 0, s14'
    t1_mainloop(k, c)
    srd_off(k, 8, 4, WS_XC, 4 * MB); srd(k, 44, 38, 4 * MB)
    for i in range(4):
        for j in range(4): k(f'v_cvt_pk_bf16_f32 v{FR+4*i+j}, v{32+8*i+2*j}, v{33+8*i+2*j}')
        k(f'buffer_store_dwordx4 {v(FR+4*i, 4)}, v{VE}, s[8:11], s56 offen offset:{i*1024} sc1 ;x')
    def addbf(src):
        for q in range(16):
            k(f'v_lshlrev_b32 v{T+2}, 16, v{src+q}\nv_and_b32 v{T+3}, 0xffff0000, v{src+q}\nv_pk_add_f32 {v(2*q,2)}, {v(2*q,2)}, {v(T+2,2)}')
    addbf(RES)
    if k.fuse == 2:
        for i in range(0, 32, 2): k(f'v_pk_add_f32 {v(i,2)}, {v(i,2)}, {v(178+i//16*2,2)} op_sel_hi:[1,0]')
    if 'w' in os.environ.get('MX', ''): k('s_waitcnt vmcnt(0)')
    stamp(k, 12)
    P, D = k.label('poll'), k.label('rdy')
    k(f's_mov_b32 s50, 0x40000\n{P}:')
    for i in range(4): k(f'buffer_load_dwordx4 {v(XC+4*i, 4)}, v{VE}, s[8:11], s57 offen offset:{i*1024} sc1')
    k(f's_waitcnt vmcnt(0)\nv_max_u32 v{T}, v{XC}, v{XC+1}')
    for i in range(2, 16, 2): k(f'v_max3_u32 v{T}, v{T}, v{XC+i}, v{XC+i+1}')
    k(f'v_cmp_eq_u32 vcc, -1, v{T}\ns_cbranch_vccz {D}\ns_sub_u32 s50, s50, 1\ns_cmp_lg_u32 s50, 0\ns_cbranch_scc1 {P}\n{D}:')
    stamp(k, 10)
    addbf(XC)
    for i in range(16): k(f'v_cvt_pk_bf16_f32 v{RES+i}, v{2*i}, v{2*i+1}')
    for i in range(4): k(f'buffer_store_dwordx4 {v(RES+4*i, 4)}, v{VN+i//2}, s[44:47], 0 offen offset:{(i%2)*32} ;x')

def proj_phase(k, VL, SW):
    c = T1(); c.SUB, c.NST, c.NSTAGES, c.MT, c.NT, c.KS, c.G = 2, 5 if 'p' in os.environ.get('UN', 'x') else 6, 16, 2, 2, 2, 6
    c.SB = 24576; XB = 16384; WBL = c.SB * c.NST; c.sCnt = 28; c.zero0 = True; c.unroll = True; c.sb = 0 if os.environ.get('PS') else 100
    FR, RES, vXd, vWp, VN, VP, MX, VB, vX, vW, T = 64, 128, 144, 145, 148, 150, 152, 155, 156, 160, 170
    k('s_and_b32 s17, s2, 3\ns_lshl_b32 s17, s17, 2\ns_bfe_u32 s18, s2, 0x20003\ns_add_u32 s17, s17, s18')
    k('s_bfe_u32 s18, s2, 0x10002\ns_lshl_b32 s18, s18, 3\ns_lshr_b32 s19, s2, 5\ns_add_u32 s18, s18, s19')
    k(f's_lshl_b32 s30, s17, 2\ns_add_u32 s30, s30, s{SW}\ns_lshl_b32 s22, s30, 16\nv_lshlrev_b32 v{VB}, 4, v{VL}\nv_add_u32 v{vXd}, s22, v{VB}')
    k(f'v_lshrrev_b32 v{T}, 3, v{VL}\nv_and_b32 v{T+1}, 7, v{VL}\nv_bfe_u32 v{T+2}, v{VL}, 4, 1\nv_lshlrev_b32 v{T+2}, 2, v{T+2}\nv_xor_b32 v{T+1}, v{T+1}, v{T+2}')
    k(f'v_lshlrev_b32 v{T}, 11, v{T}\nv_lshl_add_u32 v{T}, v{T+1}, 4, v{T}\ns_lshl_b32 s22, s{SW}, 15\ns_lshl_b32 s23, s18, 7\ns_add_u32 s22, s22, s23')
    k(f'v_add_u32 v{vWp}, s22, v{T}\nv_add_u32 v{vWp+1}, 0x4000, v{vWp}')
    k(f's_lshl_b32 s24, s{SW}, 12\ns_lshl_b32 s25, s{SW}, 11\ns_add_u32 s25, s25, {XB}\ns_mov_b32 s26, 0\ns_mov_b32 s27, 0')
    k(f's_and_b32 s20, s{SW}, 1\ns_lshr_b32 s21, s{SW}, 1\ns_lshl_b32 s22, s20, 10\ns_add_u32 m0, s22, {WBL}\ns_add_u32 s22, s22, {WS_WBAR - WS_MEANX}')
    k('s_waitcnt lgkmcnt(0)')
    srd_off(k, 48, 4, WS_MEANX, 65536 + 2048 * 4 * SSN); srd_off(k, 8, 4, WS_O, 4 * MB); srd(k, 12, 6, 2 * MB)
    k(f'buffer_load_dwordx4 v{VB}, s[48:51], s22 offen lds')
    def dma(slot):
        x = [(f's_add_u32 m0, s24, {slot*c.SB}\ns_nop 0\n' if j in (0, c.GA - 2) else '') + f'buffer_load_dwordx4 v{vXd}, s[8:11], s26 offen offset:{j*1024} lds' for j in range(4)]
        return [f's_add_u32 m0, s25, {slot*c.SB + b*1024}\ns_nop 0\nbuffer_load_dwordx4 v{vWp+b}, s[12:15], s27 offen lds' for b in range(2)] + x
    c.dma = dma; c.adv = f's_add_u32 s26, s26, 4096\ns_add_u32 s27, s27, {64*2048}'
    def late2():
        k(f's_lshl_b32 s22, s21, 13\nv_add_u32 v{vX}, s22, v{VB}')
        k('s_lshl_b32 s30, s17, 2\ns_lshl_b32 s22, s21, 1\ns_add_u32 s30, s30, s22')
        k(f's_lshl_b32 s22, s30, 16\ns_lshl_b32 s23, s18, 1\ns_add_u32 s23, s23, s20\ns_lshl_b32 s29, s23, 6\ns_add_u32 s29, s29, s22')
        k(f'v_and_b32 v{MX+2}, 31, v{VL}\nv_lshlrev_b32 v{T}, 11, v{MX+2}\nv_lshrrev_b32 v{T+1}, 5, v{VL}\nv_lshl_add_u32 v{T}, v{T+1}, 4, v{T}\nv_add_u32 v{VN}, s29, v{T}\nv_add_u32 v{VN+1}, 0x10000, v{VN}')
        k(f's_lshl_b32 s29, s23, 11\ns_add_u32 s29, s29, s22\nv_add_u32 v{VP}, s29, v{VB}\nv_add_u32 v{VP+1}, 0x10000, v{VP}')
        k(f's_lshl_b32 s22, s{SW}, 9\ns_add_u32 s22, s22, {WBL + 2048}\nv_lshl_add_u32 v{T}, v{VL}, 3, s22\nv_mov_b32 v{T+2}, 0\nv_mov_b32 v{T+3}, 0\nds_write_b64 v{T}, {v(T+2, 2)}')
        k(f'v_lshrrev_b32 v{T}, 2, v{VL}\nv_xor_b32 v{T}, v{T}, v{VL}\nv_bfe_u32 v{T}, v{T}, 2, 1\nv_lshl_add_u32 v{T+1}, v{T}, 7, v{T+1}')
        k(f'v_lshlrev_b32 v{VB}, 4, v{T+1}\nv_add_u32 v{VB}, {WBL}, v{VB}\nv_lshlrev_b32 v{MX+2}, 2, v{MX+2}\ns_lshl_b32 s31, s30, 7')
        tr_lane_terms(k, VL, T, T+1, T+2)
        k(f'v_and_b32 v{T+3}, 1, v{T}\nv_lshlrev_b32 v{T+3}, 1, v{T+3}\ns_lshl_b32 s22, s20, 2\nv_add_u32 v{T+3}, s22, v{T+3}')
        k(f'v_lshrrev_b32 v{T+4}, 1, v{T+2}\nv_add_u32 v{T+3}, v{T+3}, v{T+4}\nv_lshrrev_b32 v{T+4}, 1, v{T+1}\nv_lshlrev_b32 v{T+4}, 2, v{T+4}\nv_xor_b32 v{T+3}, v{T+3}, v{T+4}')
        k(f'v_lshlrev_b32 v{T+3}, 4, v{T+3}\nv_and_b32 v{T+4}, 1, v{T+2}\nv_lshl_add_u32 v{T+3}, v{T+4}, 3, v{T+3}\nv_lshl_add_u32 v{T+3}, v{T+1}, 7, v{T+3}')
        k(f'v_lshrrev_b32 v{T+4}, 1, v{T}\nv_lshl_add_u32 v{vW}, v{T+4}, 10, v{T+3}')
        for i in (1, 2): k(f'v_add_u32 v{vX+i}, {2*i*c.SB}, v{vX}\nv_add_u32 v{vW+i}, {2*i*c.SB}, v{vW}')
        srd_off(k, 40, 4, WS_HN, 4 * MB); srd(k, 44, 34, 4 * MB)
        k('s_waitcnt lgkmcnt(0)')
    c.late2 = late2
    c.xaddr = lambda sl, mt, kt: f'v{vX + sl//2} offset:{(sl&1)*c.SB + (mt*4 + kt)*1024}'
    c.waddr = lambda sl, nt, kt, hf: f'v{vW + sl//2} offset:{(sl&1)*c.SB + XB + kt*2048 + hf*512}'
    c.wk = -1
    def wlast(r): c.wk += 1; return f'ds_read_b128 {r}, v{VB} offset:{c.wk%4*32}' + (f'\nv_add_u32 v{VB}, 128, v{VB}' if c.wk % 4 == 3 else '')
    c.wlast = wlast
    c.tailx = [f'buffer_load_dwordx4 {v(RES+8*mt+4*q, 4)}, v{VN+mt}, s[44:47], 0 offen offset:{q*32}' for mt in range(2) for q in range(2)]
    c.tailx += [f'buffer_load_dword v{MX+mt}, v{MX+2}, s[48:51], s31 offen offset:{mt*128}' for mt in range(2)]
    c.frag = lambda i, n: v(FR + i, n)
    c.swap = lambda nt: False
    c.RS, c.DS, c.BP, c.GA = [int(x) for x in os.environ.get('PP', '6,1,1,4').split(',')]
    if 'p' in os.environ.get('UN', 'x'):
        c.uni = True; c.peel = [18]; c.adv += f'\ns_cmp_ge_u32 s26, {16*4096}\ns_cselect_b32 s10, 0, s10\ns_cselect_b32 s14, 0, s14'
    t1_mainloop(k, c)
    for q in range(16):
        k(f'v_lshlrev_b32 v{T+2}, 16, v{RES+q}\nv_and_b32 v{T+3}, 0xffff0000, v{RES+q}\nv_pk_add_f32 {v(2*q,2)}, {v(2*q,2)}, {v(T+2,2)}')
    NM = k.label('nomu')
    k(f'v_add_f32 v32, v32, v{MX}\nv_add_f32 v48, v48, v{MX+1}\ns_add_u32 s31, s31, 8192\ns_cmp_lg_u32 s23, 0\ns_cbranch_scc1 {NM}')
    for mt in range(2): k(f'buffer_store_dword v{32+16*mt}, v{MX+2}, s[48:51], s31 offen offset:{mt*128} sc1')
    k(NM + ':')
    for mt in range(2):
        for i in range(0, 16, 2): k(f'v_pk_add_f32 {v(16*mt+i,2)}, {v(16*mt+i,2)}, {v(32+16*mt,2)} op_sel_hi:[1,0] neg_lo:[0,1] neg_hi:[0,1]')
        for i in range(8): k(f'v_cvt_pk_bf16_f32 v{FR+8*mt+i}, v{16*mt+2*i}, v{16*mt+2*i+1}')
        for q in range(2): k(f'buffer_store_dwordx4 {v(FR+8*mt+4*q, 4)}, v{VP+mt}, s[40:43], 0 offen offset:{q*1024}')
    k('v_pk_mul_f32 v[32:33], v[0:1], v[0:1]\nv_pk_mul_f32 v[34:35], v[16:17], v[16:17]')
    for i in range(2, 16, 2): k(f'v_pk_fma_f32 v[32:33], {v(i,2)}, {v(i,2)}, v[32:33]\nv_pk_fma_f32 v[34:35], {v(16+i,2)}, {v(16+i,2)}, v[34:35]')
    k('v_add_f32 v32, v32, v33\nv_add_f32 v33, v34, v35')
    xhalf_add(k, 32, 34); xhalf_add(k, 33, 34)
    k(f'v_lshlrev_b32 v{MX+2}, 2, v{MX+2}\ns_lshr_b32 s22, s23, 2\ns_lshl_b32 s22, s22, 9\ns_and_b32 s23, s23, 3\ns_lshl_b32 s23, s23, 2\ns_add_u32 s23, s23, s22\ns_lshl_b32 s22, s30, 12\ns_add_u32 s22, s22, s23\ns_add_u32 s22, s22, {WS_SS - WS_MEANX}\ns_add_u32 s23, s22, 4096\ns_mov_b32 exec_hi, 0')
    for mt in range(2): k(f'buffer_store_dword v{32+mt}, v{MX+2}, s[48:51], s{22+mt} offen sc1')
    k('s_mov_b32 exec_hi, -1\ns_lshl_b32 s51, s17, 12\ns_lshl_b32 s22, s18, 2\ns_add_u32 s51, s51, s22\ns_add_u32 s51, s51, 65536')

def gateup_kernel(fuse=False):
    c = T1(); c.SUB, c.NST, c.NSTAGES, c.MT, c.NT, c.G = 2, 4, 32, 2, 7, 8
    XB = 16384; UP = 7168 + 128; c.SB = 30976; DUMMY = c.SB * c.NST
    k = K('mlp_kernel' if fuse else 'gateup_kernel', 256, 256, DUMMY + 1024, vgpr=256 + 72 + SSN, sgpr=60, accum=256)
    k.fuse = fuse
    if os.environ.get('PS'): c.sb = 100
    guard(k, 256)
    stamp(k, 0)
    if os.environ.get('RT'): k('s_memrealtime s[60:61]')
    k(f's_load_dwordx2 s[4:5], s[0:1], {ARG_WS}\ns_load_dwordx4 s[36:39], s[0:1], {ARG_WG}')
    VL = 224; SW = 16
    if fuse == 2: k(f's_load_dwordx2 s[6:7], s[0:1], {ARG_WO}\ns_load_dwordx2 s[34:35], s[0:1], {ARG_X}')
    lane_setup(k, VL, SW)
    if fuse == 2: proj_phase(k, VL, SW)
    k('s_and_b32 s17, s2, 1\ns_lshl_b32 s17, s17, 2\ns_bfe_u32 s18, s2, 0x20003\ns_add_u32 s17, s17, s18')
    k('s_bfe_u32 s18, s2, 0x20001\ns_lshl_b32 s18, s18, 3\ns_lshr_b32 s19, s2, 5\ns_add_u32 s18, s18, s19')
    vD = 225
    LW, LE = k.label('w'), k.label('e')
    k(f's_cmp_lt_u32 s{SW}, 2\ns_cbranch_scc1 {LW}')
    k(f's_sub_u32 s22, s{SW}, 2\ns_lshl_b32 s24, s22, 13\ns_lshl_b32 s22, s22, 2\ns_lshl_b32 s23, s17, 3\ns_add_u32 s22, s22, s23\ns_lshl_b32 s22, s22, 16')
    k(f'v_lshlrev_b32 v240, 4, v{VL}\nv_add_u32 v240, s22, v240')
    for i in range(8): k(f'v_add_u32 v{vD+i}, {(i>>1)*65536 + (i&1)*1024}, v240')
    k(f's_mov_b32 s27, 2048\ns_add_u32 s25, s24, {7*1024}\ns_mov_b32 s30, {c.SB}')
    k('s_waitcnt lgkmcnt(0)')
    srd_off(k, 8, 4, WS_HN, 4*MB)
    k(f's_branch {LE}')
    k(LW + ':')
    k(f's_mul_i32 s24, s{SW}, {UP}\ns_add_u32 s24, s24, {XB}\ns_mul_i32 s22, s18, 224')
    for i in range(7):
        k(f'v_add_u32 v240, {i*64}, v{VL}\nv_mul_u32_u24 v241, 4682, v240\nv_lshrrev_b32 v241, 16, v241\nv_mul_u32_u24 v241, {7168-224}, v241\nv_lshl_add_u32 v241, v240, 4, v241\nv_add_u32 v{vD+i}, s22, v241')
    k(f'v_mov_b32 v{vD+7}, 0x7f000000\ns_mov_b32 s27, {32*7168}\ns_mov_b32 s25, {DUMMY}\ns_mov_b32 s30, 0')
    k('s_waitcnt lgkmcnt(0)')
    k(f's_cmp_eq_u32 s{SW}, 0\ns_cselect_b32 s8, s36, s38\ns_cselect_b32 s9, s37, s39\ns_and_b32 s9, s9, 0xffff\ns_mov_b32 s10, {1024*7168}\ns_mov_b32 s11, 0x00020000')
    k(LE + ':')
    k('s_mov_b32 s26, 0\ns_mov_b32 s31, s25')
    def dma(slot):
        r = [f's_add_u32 m0, s24, {slot*c.SB + j*1024}\ns_nop 0\nbuffer_load_dwordx4 v{vD+j}, s[8:11], s26 offen lds' for j in range(7)]
        r.append(f's_mov_b32 m0, s{31+slot}\ns_nop 0\nbuffer_load_dwordx4 v{vD+7}, s[8:11], s26 offen lds')
        return r
    c.dma = dma; c.adv = 's_add_u32 s26, s26, s27'
    c.vX = [233 + i for i in range(4)]; c.vW = [244 + i for i in range(4)]
    def late():
        if fuse: k(f's_load_dwordx4 s[36:39], s[0:1], {ARG_WD}')
        for sl in range(1, 4): k(f's_add_u32 s{31+sl}, s{30+sl}, s30')
        srd_off(k, 40, 4, WS_SS, 131072 * SSN // 16)
        k(f'v_and_b32 v237, 31, v{VL}\nv_lshlrev_b32 v237, 4, v237\nv_lshrrev_b32 v241, 5, v{VL}\nv_lshl_add_u32 v237, v241, 11, v237')
        k(f's_lshl_b32 s44, s17, 2\ns_add_u32 s44, s44, s{SW}\ns_lshl_b32 s44, s44, 13\ns_add_u32 s45, s44, 4096')
        k(f's_lshl_b32 s22, s{SW}, 12\nv_lshlrev_b32 v240, 4, v{VL}\nv_add_u32 v240, s22, v240')
        for sl in range(4): k(f'v_add_u32 v{c.vX[sl]}, {sl*c.SB}, v240')
        tr_lane_terms(k, VL, 240, 241, 242)
        k(f'v_and_b32 v243, 1, v240\nv_mul_u32_u24 v243, {UP}, v243\nv_lshrrev_b32 v240, 1, v240\nv_lshl_add_u32 v240, v240, 3, v241\nv_mul_u32_u24 v240, 224, v240')
        k('v_add_u32 v243, v243, v240\nv_lshl_add_u32 v243, v242, 3, v243')
        for sl in range(4): k(f'v_add_u32 v{c.vW[sl]}, {sl*c.SB + XB}, v243')
        k('s_waitcnt lgkmcnt(0)')
    c.late = late
    if fuse: c.late2 = lambda: down_setup(k, VL, SW); k.vgpr += 8
    def pro():
        srd_off(k, 52, 4, WS_FL, 262144)
        A, B = k.label('nf'), k.label('np')
        k(f'v_lshlrev_b32 v0, 7, v{VL}\nv_lshlrev_b32 v249, 2, v{VL}\nv_mov_b32 v2, 1\ns_lshl_b32 s22, s17, 1\ns_add_u32 s22, s22, s{SW}\ns_add_u32 s22, s22, 14\ns_lshl_b32 s22, s22, 5\ns_add_u32 s22, s22, s18\ns_lshl_b32 s6, s22, 7')
        if os.environ.get('PS'): stamp(k, 6)
        k(f's_waitcnt vmcnt(0)\ns_barrier\ns_cmp_lg_u32 s{SW}, 0\ns_cbranch_scc1 {A}\ns_mov_b32 exec_hi, 0\nbuffer_store_dword v2, v0, s[52:55], s51 offen sc1\ns_mov_b32 exec_hi, -1\n{A}:')
        if os.environ.get('PS'): stamp(k, 7)
        late(); c.late2()
        if getattr(c, 'uni', False):
            k('s_lshl_b32 s29, s27, 5')
            for i in range(0, 224, 2): k(f'v_mov_b64 {v(i, 2)}, 0')
        if os.environ.get('PS'): stamp(k, 8)
        k(f's_cmp_lt_u32 s{SW}, 2\ns_cbranch_scc1 {B}\ns_mov_b64 exec, 0xffff')
        poll(k, 249, 's6', '0xffff')
        k(B + ':')
        for t in range(3):
            for x in dma(t): k(x)
            k(c.adv)
        for x in dma(3)[:4]: k(x)
        k('s_waitcnt vmcnt(20)\ns_barrier')
        if os.environ.get('PS'): stamp(k, 9)
    if fuse == 2: c.pro = pro
    c.tailx = [f'buffer_load_dwordx4 {a_(72+mt*16+4*q, 4)}, v237, s[40:43], s{44+mt} offen offset:{q*512}' for mt in range(2) for q in range(4)]
    c.xoff = lambda mt, j: (mt * 2 + j) * 1024
    c.woff = lambda nt, j, hf: (j * 16 + hf * 4) * 224 + nt * 32
    c.swap = lambda nt: False
    c.RS, c.DS, c.BP, c.GA = 8, 0, 2, 4
    if fuse == 2 and 'g' in os.environ.get('UN', 'x'):
        c.uni = True; c.adv += '\ns_cmp_ge_u32 s26, s29\ns_cselect_b32 s10, 0, s10'
    elif os.environ.get('GZ', '1') == '1': c.zero0 = True; c.peel = [16] * 4
    CA, CS = (238, 248), (240, 250)
    def prelude(mt):
        t = K('t', 0, 0, 0)
        for i in range(8): t(f'v_accvgpr_read_b32 v{225+i}, a{72+mt*SSN//2+i}')
        for i in range(8, SSN // 2): t(f'v_accvgpr_read_b32 v242, a{72+mt*SSN//2+i}\nv_add_f32 v{225+i%8}, v{225+i%8}, v242')
        for i in range(4): t(f'v_add_f32 v{225+i}, v{225+i}, v{229+i}')
        t('v_add_f32 v225, v225, v226\nv_add_f32 v227, v227, v228\nv_add_f32 v225, v225, v227')
        xhalf_add(t, 225, 226)
        t(f'v_mov_b32 v226, {f2u(1e-5)}\nv_fmac_f32 v226, {f2u(1/1024)}, v225\nv_rsq_f32 v227, v226\nv_sqrt_f32 v{CS[mt]}, v226\ns_nop 0\nv_mul_f32 v{CA[mt]}, {f2u(-LOG2E)}, v227')
        return [(None, x) for x in t.l]
    assert not getattr(c, 'uni', False)
    tx = [(None, x) for x in c.tailx]; c.tailx = []; assert len(c.peel) == 4
    c.XS = 0; c.extra = lambda t, j, s_: (prelude(t - 29)[:21] if j == 0 else prelude(t - 29)[21:]) if t in (29, 30) else (tx[(t - 2) * 4 + j * 2:(t - 2) * 4 + j * 2 + 2] if t in (2, 3) else [])
    c.sCnt = 28
    t1_mainloop(k, c)
    wpre = down_pre(k, SW) if fuse else ['', '']
    for x in wpre: k(x)
    srd_off(k, 8, 4, WS_HH, 64*224*1024)
    k(f's_lshl_b32 s22, s17, 3\ns_lshl_b32 s23, s{SW}, 1\ns_add_u32 s22, s22, s23\ns_mul_i32 s22, s22, 224\ns_mul_i32 s23, s18, 7\ns_add_u32 s22, s22, s23\ns_lshl_b32 s22, s22, 10')
    k(f's_add_u32 s23, s22, {224*1024}')
    k(f'v_lshlrev_b32 v225, 4, v{VL}')
    EL = os.environ.get('EL', 'p')
    if EL != '0':
        LP = k.label('epi')
        k(f's_mov_b32 s28, 0\n{LP}:')
        for mt in range(2):
            t, o, b = 226, 234 + 10 * mt, mt * 16
            def ix(f):
                k('s_set_gpr_idx_on s28, 0x1\ns_nop 0'); f(); k('s_set_gpr_idx_off')
            if EL == 'p': ix(lambda: [k(f'v_pk_mul_f32 {v(t+i,2)}, {v(b+i,2)}, {v(CA[mt],2)} op_sel_hi:[1,0]') for i in range(0, 8, 2)])
            else: ix(lambda: [k(f'v_mul_f32 v{t+i}, v{b+i}, v{CA[mt]}') for i in range(8)])
            for i in range(8): k(f'v_exp_f32 v{t+i}, v{t+i}')
            for i in range(0, 8, 2): k(f'v_pk_fma_f32 {v(t+i,2)}, {v(t+i,2)}, {v(CS[mt],2)}, {v(CS[mt],2)} op_sel_hi:[1,0,0]')
            k(wpre[mt])
            for i in range(8): k(f'v_rcp_f32 v{t+i}, v{t+i}')
            if EL == 'p': ix(lambda: [k(f'v_pk_mul_f32 {v(t+i,2)}, {v(b+8+i,2)}, {v(t+i,2)}') for i in range(0, 8, 2)])
            else: ix(lambda: [k(f'v_mul_f32 v{t+i}, v{b+8+i}, v{t+i}') for i in range(8)])
            for i in range(4): k(f'v_cvt_pk_bf16_f32 v{o+i}, v{t+2*i}, v{t+1+2*i}')
            k(f'buffer_store_dwordx4 v[{o}:{o+3}], v225, s[8:11], s{22+mt} offen\ns_add_u32 s{22+mt}, s{22+mt}, 1024')
        k(f's_add_u32 s28, s28, 32\ns_cmp_lg_u32 s28, 224\ns_cbranch_scc1 {LP}')
    if fuse: down_phase(k, VL, SW)
    if os.environ.get('RT'):
        k.sgpr = 102
        k('s_memrealtime s[66:67]\ns_waitcnt lgkmcnt(0)\nv_mov_b32 v0, s60\nv_mov_b32 v1, s62\nv_mov_b32 v2, s64\nv_mov_b32 v3, s66\nv_mov_b32 v4, 0\ns_lshr_b32 s56, s56, 8')
        srd_off(k, 8, 4, 0, 65536)
        k('buffer_store_dwordx4 v[0:3], v4, s[8:11], s56 offen')
    stamp_end(k)
    return k
```
